```python
import torch

def _softmax(x, axis=-1):
    return torch.softmax(x, dim=axis)
def _gelu(x):
    return torch.nn.functional.gelu(x, approximate="tanh")
def _silu(x):
    return torch.nn.functional.silu(x)
def _sigmoid(x):
    return torch.sigmoid(x)
def _layernorm(x, axis=-1, eps=1e-5):
    m = x.mean(dim=axis, keepdim=True)
    v = x.var(dim=axis, keepdim=True, unbiased=False)
    return (x - m) / torch.sqrt(v + eps)
def _scatter_add(tgt, idx, src, axis=0):
    return tgt.clone().index_add_(axis, idx, src)
def _segment_sum(src, seg, n):
    out = torch.zeros((n,) + src.shape[1:], dtype=src.dtype)
    return out.index_add_(0, seg, src)
def _pad(x, pw):
    flat = tuple(v for pair in reversed(pw) for v in pair)
    return torch.nn.functional.pad(x, flat)

kernel_name = 'recurrent_scan__sliding_block_cached__swiglu_ffn__decode'

def setup_inputs():

    _w = (lambda a: (lambda t: t.to(torch.bfloat16) if t.is_floating_point() else t)(torch.as_tensor(a)))
    def _A_setup():
        B, Sq, D = 1, 1, 576
        Hq, Hkv, Sk, Dh = 32, 16, 65536, 128
        assert Hq % Hkv == 0, (Hq, Hkv)
        return {
            "x": _w((lambda *s: torch.randn(*s, dtype=torch.bfloat16) * 0.05)(B, Sq, D)),
            "k_cache": _w((lambda *s: torch.randn(*s, dtype=torch.bfloat16) * 0.8)(B, Hkv, Sk, Dh)),
            "v_cache": _w((lambda *s: torch.randn(*s, dtype=torch.bfloat16) * 0.2)(B, Hkv, Sk, Dh)),
            "wq": _w((lambda *s: torch.randn(*s, dtype=torch.bfloat16) * 0.8)(D, Hq * Dh) * (D ** -0.5)),
            "wo": _w((lambda *s: torch.randn(*s, dtype=torch.bfloat16) * 0.2)(Hq * Dh, D) * ((Hq * Dh) ** -0.5)),
        }
    _A_in = _A_setup()

    def _B_setup():
        B, S, D, F = 1, 1, 576, 4608
        return {
            "x": _w((lambda *s: torch.randn(*s, dtype=torch.bfloat16) * 0.05)(B, S, D)),
            "w_gate": _w((lambda *s: torch.randn(*s, dtype=torch.bfloat16) * 0.1)(D, F)),
            "w_up": _w((lambda *s: torch.randn(*s, dtype=torch.bfloat16) * 0.1)(D, F)),
            "w_down": _w((lambda *s: torch.randn(*s, dtype=torch.bfloat16) * 0.1)(F, D)),
        }
    _B_in = _B_setup()

    return {
        "A_x": _A_in["x"],
        "A_k_cache": _A_in["k_cache"],
        "A_v_cache": _A_in["v_cache"],
        "A_wq": _A_in["wq"],
        "A_wo": _A_in["wo"],
        "B_x": _B_in["x"],
        "B_w_gate": _B_in["w_gate"],
        "B_w_up": _B_in["w_up"],
        "B_w_down": _B_in["w_down"],
    }

def reference(A_x, A_k_cache, A_v_cache, A_wq, A_wo, B_x, B_w_gate, B_w_up, B_w_down):
    def _A_ref(x, k_cache, v_cache, wq, wo):
        B, Sq, D = x.shape
        Hq, Dh = 32, 128
        Hkv, Sk = k_cache.shape[1], k_cache.shape[2]
        W = min(4096, max(256, Sk // 4))
        rep = Hq // Hkv
        q = (lambda x, *d: x.permute(*d))((x @ wq).reshape(B, Sq, Hq, Dh), 0, 2, 1, 3)
        k = (lambda x, n, axis: torch.repeat_interleave(x, n, dim=axis))(k_cache[:, :, Sk - W:, :], rep, axis=1)
        v = (lambda x, n, axis: torch.repeat_interleave(x, n, dim=axis))(v_cache[:, :, Sk - W:, :], rep, axis=1)
        scores = torch.einsum("bhqd,bhkd->bhqk", q, k) * (Dh ** -0.5)
        p = _softmax(scores, axis=-1)
        o = torch.einsum("bhqk,bhkd->bhqd", p, v)
        return (lambda x, *d: x.permute(*d))(o, 0, 2, 1, 3).reshape(B, Sq, Hq * Dh) @ wo

    def _B_ref(x, w_gate, w_up, w_down):
        g = _silu(x @ w_gate)
        u = x @ w_up
        return (g * u) @ w_down

    x = A_x
    xn = _layernorm(x, axis=-1)
    s = _A_ref(xn, A_k_cache, A_v_cache, A_wq, A_wo)
    g = _silu(_B_ref(xn, B_w_gate, B_w_up, B_w_down))
    return x + s * g
```

```python
NAME = "recurrent_scan__sliding_block_cached__swiglu_ffn__decode"
HDR = """; Kernarg layout for this problem (96 bytes, ptrs only, base s[0:1]):
"""

def wrap(body, grid=(256,1,1), block=(512,1,1), lds=0, vgpr=256, sgpr=102, accum=None, name=NAME+"_kernel", pre=""):
    accum = accum if accum is not None else ((min(vgpr,256)+3)//4*4)
    s = HDR
    s += f"; @launch grid=({grid[0]},{grid[1]},{grid[2]}) block=({block[0]},{block[1]},{block[2]}) lds={lds}\n"
    s += '.amdgcn_target "amdgcn-amd-amdhsa--gfx950"\n'
    s += pre
    s += ".text\n"
    s += f".globl {name}\n.p2align 8\n.type {name},@function\n{name}:\n"
    s += body
    s += "\ns_endpgm\n"
    s += '.section .rodata,"a"\n.p2align 6\n'
    s += f".amdhsa_kernel {name}\n  .amdhsa_next_free_vgpr {vgpr}\n  .amdhsa_next_free_sgpr {sgpr}\n  .amdhsa_accum_offset {accum}\n"
    s += "  .amdhsa_group_segment_fixed_size 0\n  .amdhsa_kernarg_size 96\n  .amdhsa_user_sgpr_count 2\n  .amdhsa_user_sgpr_kernarg_segment_ptr 1\n  .amdhsa_system_sgpr_workgroup_id_x 1\n.end_amdhsa_kernel\n"
    return s
```

```python
import re

def _regs(tok):
    tok = tok.strip()
    tok = tok.lstrip('-')
    m = re.match(r'^abs\((.*)\)$', tok)
    if m: tok = m.group(1)
    m = re.match(r'^([vsa])(\d+)$', tok)
    if m: return [(m.group(1), int(m.group(2)))]
    m = re.match(r'^([vsa])\[(\d+):(\d+)\]$', tok)
    if m: return [(m.group(1), i) for i in range(int(m.group(2)), int(m.group(3))+1)]
    if tok == 'vcc': return [('s', 106), ('s', 107)]
    if tok == 'vcc_lo': return [('s', 106)]
    if tok == 'vcc_hi': return [('s', 107)]
    if tok == 'exec': return [('s', 126), ('s', 127)]
    if tok == 'm0': return [('s', 124)]
    return []

TRANS = ('v_exp_f32', 'v_log_f32', 'v_rcp_f32', 'v_rsq_f32', 'v_sqrt_f32', 'v_sin_f32', 'v_cos_f32')

class Ins:
    __slots__ = ('text', 'mn', 'ops', 'kind', 'wv', 'rv', 'ws', 'rs', 'dpp', 'isnop', 'srcc', 'srcab', 'stdata', 'lanesel')
    def __init__(self, text):
        self.text = text
        t = text.split(';')[0].strip()
        self.kind = 'other'
        self.wv = set(); self.rv = set(); self.ws = set(); self.rs = set()
        self.dpp = False; self.isnop = 0; self.srcc = set(); self.srcab = set(); self.stdata = set(); self.lanesel = set()
        if not t or t.endswith(':') or t.startswith('.'):
            self.kind = 'label' if t.endswith(':') else 'dir'
            self.mn = ''; self.ops = []
            return
        parts = t.split(None, 1)
        mn = parts[0]; self.mn = mn
        rest = parts[1] if len(parts) > 1 else ''
        ops = []; cur = ''; depth = 0
        for ch in rest:
            if ch in '[(': depth += 1
            if ch in '])': depth -= 1
            if ch == ',' and depth == 0:
                ops.append(cur.strip()); cur = ''
            else: cur += ch
        if cur.strip(): ops.append(cur.strip())
        mods = ''
        if ops:
            sp = ops[-1].split(None, 1)
            if len(sp) > 1 and not ops[-1].startswith('hwreg'):
                ops[-1] = sp[0]; mods = sp[1]
        self.ops = ops
        def addr(tok):
            for k, i in _regs(tok):
                (self.rv if k in 'va' else self.rs).add((k, i) if k != 's' else i)
        def addw(tok):
            for k, i in _regs(tok):
                (self.wv if k in 'va' else self.ws).add((k, i) if k != 's' else i)
        if mn == 's_nop':
            self.kind = 'nop'; self.isnop = int(ops[0], 0) + 1
        elif mn.startswith('v_mfma'):
            self.kind = 'mfma'
            addw(ops[0])
            for o in ops[1:3]:
                addr(o)
                for k, i in _regs(o): self.srcab.add((k, i))
            addr(ops[3])
            for k, i in _regs(ops[3]): self.srcc.add((k, i))
        elif mn.startswith('v_'):
            self.kind = 'valu'
            self.dpp = ('_dpp' in mn) or ('row_' in mods) or ('quad_perm' in mods)
            base = mn.replace('_dpp', '').replace('_e32', '').replace('_e64', '')
            if base.startswith('v_cmp'):
                addw(ops[0]); [addr(o) for o in ops[1:]]
            elif base in ('v_readfirstlane_b32', 'v_readlane_b32'):
                self.kind = 'readlane'
                addw(ops[0]); addr(ops[1])
                if len(ops) > 2:
                    addr(ops[2])
                    for k, i in _regs(ops[2]): self.lanesel.add(i)
            elif base == 'v_writelane_b32':
                addw(ops[0]); addr(ops[0]); addr(ops[1])
            elif base.startswith('v_permlane') and 'swap' in base:
                self.kind = 'swap'
                addw(ops[0]); addw(ops[1]); addr(ops[0]); addr(ops[1])
            elif base in ('v_add_co_u32', 'v_sub_co_u32', 'v_addc_co_u32', 'v_subb_co_u32', 'v_subrev_co_u32'):
                addw(ops[0]); addw(ops[1]); [addr(o) for o in ops[2:]]
            else:
                addw(ops[0]); [addr(o) for o in ops[1:]]
                if base in ('v_fmac_f32', 'v_dot2c_f32_bf16', 'v_pk_fmac_f16') or self.dpp:
                    addr(ops[0])
                if base == 'v_cndmask_b32' and len(ops) == 3:
                    addr('vcc')
                if base in TRANS: self.kind = 'trans'
        elif mn.startswith(('global_load', 'buffer_load', 'flat_load')):
            self.kind = 'vmem'
            if '_lds_' in mn:
                [addr(o) for o in ops]
            else:
                addw(ops[0]); [addr(o) for o in ops[1:]]
        elif mn.startswith(('global_store', 'buffer_store', 'global_atomic', 'buffer_atomic')):
            self.kind = 'vmem'
            [addr(o) for o in ops]
            if mn.startswith('global_store') and ('x4' in mn or 'x3' in mn):
                for k, i in _regs(ops[1]): self.stdata.add((k, i))
            if mn.startswith('buffer_store') and ('x4' in mn or 'x3' in mn):
                for k, i in _regs(ops[0]): self.stdata.add((k, i))
        elif mn.startswith('ds_'):
            self.kind = 'ds'
            if mn.startswith(('ds_read', 'ds_bpermute', 'ds_permute', 'ds_swizzle')) or '_rtn' in mn:
                addw(ops[0]); [addr(o) for o in ops[1:]]
            else:
                [addr(o) for o in ops]
        elif mn.startswith('s_'):
            self.kind = 'salu'
            if mn.startswith(('s_cmp', 's_cbranch', 's_branch', 's_waitcnt', 's_barrier', 's_sleep', 's_setprio', 's_endpgm', 's_bitcmp')):
                [addr(o) for o in ops]
            elif ops:
                addw(ops[0]); [addr(o) for o in ops[1:]]
                if 'saveexec' in mn: addw('exec')

def needed(p, c):
    n = 0
    pvalu = p.kind in ('valu', 'trans', 'readlane', 'swap')
    cvalu = c.kind in ('valu', 'trans', 'readlane', 'swap')
    if pvalu:
        if c.kind == 'mfma' and (p.wv & c.rv): n = max(n, 2)
        if c.dpp and (p.wv & c.rv): n = max(n, 2)
        if c.kind == 'readlane' and (p.wv & c.rv): n = max(n, 1)
        if c.kind == 'swap' and (p.wv & (c.rv | c.wv)): n = max(n, 2)
        if p.kind == 'trans' and cvalu and (p.wv & c.rv): n = max(n, 1)
        if p.kind == 'trans' and c.kind == 'mfma' and (p.wv & c.rv): n = max(n, 2)
        if p.ws:
            if (cvalu or c.kind == 'mfma') and (p.ws & c.rs): n = max(n, 2)
            if c.kind == 'vmem' and (p.ws & c.rs): n = max(n, 5)
            if c.lanesel & p.ws: n = max(n, 4)
            if c.kind == 'salu' and (p.ws & c.rs): n = max(n, 1)
    if p.kind == 'mfma':
        passes16 = True
        if c.kind == 'mfma':
            if p.wv & c.srcab: n = max(n, 8)
            if p.wv & c.srcc:
                if not (p.wv == c.srcc): n = max(n, 6)
            if p.wv & c.wv and not (p.wv == c.wv): n = max(n, 8)
        elif (cvalu or c.kind in ('vmem', 'ds')):
            if p.wv & (c.rv | c.wv): n = max(n, 8)
            if cvalu and (p.srcc & c.wv): n = max(n, 3)
    if p.kind == 'vmem' and p.stdata and cvalu and (p.stdata & c.wv): n = max(n, 2)
    if p.kind == 'vmem' and p.stdata and c.kind in ('ds', 'vmem', 'mfma') and (p.stdata & c.wv): n = max(n, 1)
    return n

class Asm:
    def __init__(self):
        self.lines = []
    def __call__(self, s):
        for l in s.strip('\n').split('\n'):
            l = l.strip()
            if l: self.lines.append(l)
    def label(self, n): self.lines.append(n + ':')
    def finish(self):
        out = []; hist = []
        ins_list = [Ins(l) for l in self.lines]
        window = []
        npad = 0
        for ins in ins_list:
            if ins.kind in ('label', 'dir'):
                out.append(ins.text); continue
            need = 0
            for p, d in window:
                r = needed(p, ins) - d
                if r > need: need = r
            if need > 0:
                npad += 1
                k = need
                while k > 0:
                    m = min(k, 16)
                    out.append(f's_nop {m-1}')
                    k -= m
                window = [(p, d+need) for p, d in window]
            out.append(ins.text)
            inc = ins.isnop if ins.kind == 'nop' else 1
            window = [(p, d+inc) for p, d in window if d+inc < 24]
            if ins.kind != 'nop':
                window.append((ins, 0))
        return '\n'.join(out) + '\n', npad
```

```python
import sys, struct
from hz import Asm
from asmlib import HDR, NAME

PHI = 0x9E3779B9
WS_EPOCH = 0
WS_QP = 0x10000
WS_OS = 0x38000
WS_OP = 0x40000
WS_HP = 0xC0000
WS_PD = 0x100000
WS_PO = 0x160000
STAMP = 0x30000000
F_XN, F_Q, C_ATT, C_GU, C_VISS, F_O, F_H, C_FIN, L_TAG = 0, 4, 8, 12, 16, 20, 24, 28, 32
L_FACC = 64
L_XN = 0x100; L_Q = 0x600; L_O = 0x800; L_H = 0x880; L_GU = 0x900; L_ATT = 0x1000; L_ST = 0x3000
LDS_BYTES = 0x3100
CSC = 0.08838834764831845 * 1.4426950408889634
LOG2E = 1.4426950408889634
def f2u(x): return struct.unpack('<I', struct.pack('<f', x))[0]

S_X, S_K, S_V, S_WQ, S_WO, S_BX, S_WG, S_WU, S_WD, S_OUT, S_DBG, S_WS = 8, 10, 12, 14, 16, 18, 20, 22, 24, 26, 28, 30
S_W, S_H, S_S, S_XC, S_KK, S_PLO, S_PHI = 32, 33, 34, 35, 36, 38, 39
S_CB, S_RT, S_RBO, S_LINE = 40, 41, 42, 43
TILE = 16; ACC = 80; TMP = 112; AF = 120; DD = 124

def gen(stamps=False, nt=True, opts=None):
    opts = opts or {}
    NT = " nt" if nt else ""
    A = Asm()
    sp = lambda n: f"s[{n}:{n+1}]"
    vr = lambda n, k=4: f"v[{n}:{n+k-1}]"
    uid = [0]
    def L(p="L"):
        uid[0] += 1; return f"{p}_{uid[0]}"
    def stamp(i):
        if stamps: A(f"s_memrealtime s[{80+2*i}:{81+2*i}]")
    def lds_wait(addr, val=None, vtmp=5, vaddr=6):
        l = L("W"); d = L("WD")
        A(f"v_mov_b32 v{vaddr}, {addr}")
        A.label(l)
        A(f"ds_read_b32 v{vtmp}, v{vaddr}")
        A("s_waitcnt lgkmcnt(0)")
        A(f"v_readfirstlane_b32 s44, v{vtmp}")
        A("s_cmp_lg_u32 s44, 0" if val is None else f"s_cmp_eq_u32 s44, {val}")
        A(f"s_cbranch_scc1 {d}")
        A("s_sleep 1")
        A("s_sub_u32 s79, s79, 1")
        A(f"s_cbranch_scc0 {l}")
        A("s_branch L_DONE")
        A.label(d)
    def lds_set(addr, vt=5, va=6):
        A(f"s_waitcnt lgkmcnt(0)\n v_mov_b32 v{va}, {addr}\n v_mov_b32 v{vt}, 1\n ds_write_b32 v{va}, v{vt}")
    def lds_count(addr, vt=5, va=6):
        A(f"""s_waitcnt lgkmcnt(0)
          v_mov_b32 v{va}, {addr}
          v_mov_b32 v{vt}, 1
          s_mov_b64 exec, 1
          ds_add_rtn_u32 v{vt}, v{va}, v{vt}
          s_waitcnt lgkmcnt(0)
          v_readfirstlane_b32 s44, v{vt}
          s_mov_b64 exec, -1""")
    def mma8(tile, af, acc, first, sets=(TMP, TMP+4)):
        def P(dd):
            t = sets[dd & 1]
            sel = S_PLO if (dd & 1) == 0 else S_PHI
            for p in range(4):
                A(f"v_perm_b32 v{t+p}, v{tile+(2*p+1)*4+(dd>>1)}, v{tile+(2*p)*4+(dd>>1)}, s{sel}")
        def M(dd):
            t = sets[dd & 1]
            c = "0" if first else vr(acc+dd*4)
            A(f"v_mfma_f32_16x16x32_bf16 {vr(acc+dd*4)}, {vr(af)}, {vr(t)}, {c}")
        P(0); P(1)
        for dd in range(8):
            M(dd)
            if dd+2 < 8: P(dd+2)
    def publish64(acc, voff, base_s):
        for k in range(4):
            A(f"v_add_f32_dpp v{DD}, v{acc+(2*k)*4+1}, v{acc+(2*k)*4} row_ror:8 row_mask:{1<<k:#x} bank_mask:0xf")
            A(f"v_add_f32_dpp v{DD+2}, v{acc+(2*k+1)*4+1}, v{acc+(2*k+1)*4} row_ror:8 row_mask:{1<<k:#x} bank_mask:0xf")
        A(f"v_mov_b32 v{DD+3}, v{DD+1}")
        A("s_mov_b32 s46, 0x00ff00ff\n s_mov_b32 s47, 0x00ff00ff\n s_mov_b64 exec, s[46:47]")
        A(f"global_store_dwordx4 v{voff}, {vr(DD)}, {sp(base_s)} sc1")
        A("s_mov_b64 exec, -1")
    def rowred(op, v):
        for r in (8, 4, 2, 1):
            A(f"v_{op}_f32_dpp v{v}, v{v}, v{v} row_ror:{r} row_mask:0xf bank_mask:0xf")
    def crossrow(op, v, t):
        A(f"v_mov_b32 v{t}, v{v}\n v_permlane16_swap_b32 v{v}, v{t}\n v_{op}_f32 v{v}, v{v}, v{t}")
        A(f"v_mov_b32 v{t}, v{v}\n v_permlane32_swap_b32 v{v}, v{t}\n v_{op}_f32 v{v}, v{v}, v{t}")
    def rne(dst, src):
        A(f"v_cvt_pk_bf16_f32 v{dst}, v{src}, v{src}\n v_lshlrev_b32 v{dst}, 16, v{dst}")
    def silu(v, t):
        A(f"""v_mul_f32 v{t}, {f2u(-LOG2E):#x}, v{v}
          v_exp_f32 v{t}, v{t}
          v_add_f32 v{t}, 1.0, v{t}
          v_rcp_f32 v{t}, v{t}
          v_mul_f32 v{v}, v{v}, v{t}""")
    def tagcheck(tagv, regs, acc, t1, t2, retry):
        first = True
        for i in range(0, len(regs), 2):
            A(f"v_xor_b32 v{t1}, v{tagv}, v{regs[i]}")
            if i+1 < len(regs):
                A(f"v_xor_b32 v{t2}, v{tagv}, v{regs[i+1]}")
                A(f"v_or_b32 v{acc}, v{t1}, v{t2}" if first else f"v_or3_b32 v{acc}, v{acc}, v{t1}, v{t2}")
            else:
                A(f"v_mov_b32 v{acc}, v{t1}" if first else f"v_or_b32 v{acc}, v{acc}, v{t1}")
            first = False
        ok = L("OK")
        A(f"v_cmp_ne_u32 vcc, 0, v{acc}")
        A(f"s_cbranch_vccz {ok}")
        A("s_sub_u32 s79, s79, 1")
        A(f"s_cbranch_scc0 {retry}")
        A("s_branch L_DONE")
        A.label(ok)
    def row_of_lane(dst):
        A(f"v_lshlrev_b32 v{dst}, 5, v3\n v_lshl_add_u32 v{dst}, v1, 3, v{dst}")
    def arow_of_lane(dst):
        A(f"v_and_b32 v{dst}, 1, v0\n v_lshlrev_b32 v{dst}, 5, v{dst}\n v_lshl_add_u32 v{dst}, v1, 3, v{dst}")
    def tile1152(rowbase_s, line_s, wbase, outbase, rb_s, flag, vec):
        row_of_lane(5)
        A(f"""s_lshl_b32 s44, s{rb_s}, 6
          v_add_u32 v6, s44, v5
          v_mul_u32_u24 v6, 1152, v6
          v_lshl_add_u32 v6, v4, 4, v6
          s_lshl_b32 s44, s{line_s}, 7
          v_add_u32 v6, s44, v6
          v_add_u32 v7, 4608, v6""")
        for i in range(8):
            A(f"global_load_dwordx4 {vr(TILE+4*i)}, v{6+(i>>2)}, {sp(wbase)} offset:{(i&3)*1152}{NT}")
        A(f"""s_mul_i32 s54, s{rb_s}, 4608
          s_lshl_b32 s44, s{line_s}, 9
          s_add_u32 s54, s54, s44
          s_add_u32 s54, s54, {outbase}
          s_mov_b32 s52, {flag}
          s_mov_b32 s53, {vec}""")

    stamp(0)
    A(f"""s_cmp_ge_u32 s2, 256
      s_cbranch_scc1 L_END
      s_load_dwordx16 s[8:23], s[0:1], 0
      s_load_dwordx8 s[24:31], s[0:1], 64
      v_lshrrev_b32 v1, 6, v0
      v_and_b32 v0, 63, v0
      v_readfirstlane_b32 s{S_W}, v1
      s_and_b32 s{S_XC}, s2, 7
      s_lshr_b32 s{S_KK}, s2, 3
      s_lshr_b32 s{S_H}, s2, 7
      s_lshl_b32 s{S_H}, s{S_H}, 3
      s_add_u32 s{S_H}, s{S_H}, s{S_XC}
      s_and_b32 s{S_S}, s{S_KK}, 15
      s_mov_b32 s79, 100000
      s_mov_b32 s{S_PLO}, 0x05040100
      s_mov_b32 s{S_PHI}, 0x07060302
      v_mov_b32 v5, 0
      v_lshlrev_b32 v6, 2, v0
      ds_write_b32 v6, v5
      v_lshrrev_b32 v1, 4, v0
      v_and_b32 v2, 15, v0
      v_bfe_u32 v3, v0, 3, 1
      v_and_b32 v4, 7, v0
      s_mul_i32 s44, s{S_KK}, 11
      s_lshr_b32 s44, s44, 5
      s_mul_i32 s45, s44, 3
      s_sub_u32 s{S_RT}, s{S_KK}, s45
      s_mul_i32 s{S_CB}, s{S_XC}, 9
      s_add_u32 s{S_CB}, s{S_CB}, s44
      s_mul_i32 s44, s{S_KK}, 57
      s_lshr_b32 s44, s44, 9
      s_mul_i32 s45, s44, 9
      s_sub_u32 s{S_LINE}, s{S_KK}, s45
      s_add_u32 s44, s44, 5
      s_sub_u32 s45, s{S_KK}, 27
      s_cmp_lt_u32 s{S_KK}, 27
      s_cselect_b32 s44, s44, s45
      s_lshl_b32 s45, s{S_XC}, 2
      s_add_u32 s45, s45, s44
      s_add_u32 s46, s45, 28
      s_cmp_lt_u32 s44, 4
      s_cselect_b32 s{S_RBO}, s45, s46
      s_waitcnt lgkmcnt(0)
      s_barrier""")
    stamp(1)
    A(f"""s_cmp_ge_u32 s{S_W}, 8
      s_cbranch_scc1 L_ATT
      s_cmp_ge_u32 s{S_W}, 2
      s_cbranch_scc1 L_GV
      s_cmp_eq_u32 s{S_W}, 1
      s_cbranch_scc1 L_W1""")

    A(f"""s_lshr_b32 s44, s{S_S}, 2
      s_mul_i32 s48, s44, 144
      s_lshl_b32 s45, s48, 13
      s_lshl_b32 s46, s{S_H}, 9
      s_add_u32 s45, s45, s46
      s_and_b32 s46, s{S_S}, 3
      s_lshl_b32 s46, s46, 7
      s_add_u32 s45, s45, s46""")
    row_of_lane(5)
    A(f"""v_lshlrev_b32 v6, 13, v5
      v_lshl_add_u32 v6, v4, 4, v6
      v_add_u32 v6, s45, v6""")
    for i in range(8):
        A(f"global_load_dwordx4 {vr(16+4*i)}, v6, {sp(S_WQ)}{NT}")
        A(f"v_add_u32 v6, {8192 if i < 7 else 57*8192}, v6")
    for i in range(8):
        A(f"global_load_dwordx4 {vr(48+4*i)}, v6, {sp(S_WQ)}{NT}")
        if i < 7: A("v_add_u32 v6, 8192, v6")
    A(f"""v_lshlrev_b32 v7, 3, v3
      v_lshl_add_u32 v7, v1, 1, v7
      v_add_u32 v8, 128, v7
      v_lshlrev_b32 v8, 13, v8
      v_lshl_add_u32 v8, v4, 4, v8
      v_add_u32 v8, s45, v8""")
    A(f"global_load_dwordx4 {vr(80)}, v8, {sp(S_WQ)}{NT}")
    A("v_add_u32 v8, 8192, v8")
    A(f"global_load_dwordx4 {vr(84)}, v8, {sp(S_WQ)}{NT}")
    arow_of_lane(10)
    A(f"""v_add_u32 v10, s48, v10
      v_lshlrev_b32 v10, 1, v10
      v_and_b32 v11, 1, v0
      v_lshlrev_b32 v11, 3, v11
      v_lshl_add_u32 v11, v1, 1, v11
      v_add_u32 v11, s48, v11
      v_lshlrev_b32 v11, 1, v11
      s_lshl_b32 s45, s{S_H}, 4
      s_add_u32 s45, s45, s{S_S}
      s_lshl_b32 s45, s45, 9
      s_add_u32 s45, s45, {WS_QP}
      v_lshlrev_b32 v9, 7, v1
      v_lshl_add_u32 v9, v4, 4, v9
      v_add_u32 v9, s45, v9""")
    lds_wait(F_XN)
    stamp(2)
    A(f"""ds_read_b128 {vr(120)}, v10 offset:{L_XN}
      ds_read_b128 {vr(12)}, v10 offset:{L_XN+128}
      ds_read_b32 v10, v11 offset:{L_XN+256}
      v_mov_b32 v11, 0
      s_waitcnt vmcnt(10) lgkmcnt(0)""")
    W0ACC = 88
    mma8(16, 120, W0ACC, True, sets=(124, 4))
    A("s_waitcnt vmcnt(2)")
    mma8(48, 12, W0ACC, False, sets=(124, 4))
    A(f"""v_mov_b32 v5, {L_TAG}
      ds_read_b32 v{DD+1}, v5
      v_mov_b32 v17, 0
      v_mov_b32 v19, 0
      s_waitcnt vmcnt(0)""")
    for dd in range(8):
        t = 16 + (dd & 1) * 2
        sel = S_PLO if (dd & 1) == 0 else S_PHI
        A(f"v_perm_b32 v{t}, v{84+(dd>>1)}, v{80+(dd>>1)}, s{sel}")
        A(f"v_mfma_f32_16x16x16_bf16 {vr(W0ACC+dd*4)}, v[10:11], v[{t}:{t+1}], {vr(W0ACC+dd*4)}")
    A("s_waitcnt lgkmcnt(0)")
    publish64(W0ACC, 9, S_WS)
    stamp(3)
    A("s_branch L_DONE")

    A.label("L_W1")
    A(f"""v_lshlrev_b32 v5, 4, v0
      v_mov_b32 v20, 0
      v_mov_b32 v21, 0
      v_mov_b32 v22, 0
      v_mov_b32 v23, 0
      global_load_dwordx4 {vr(16)}, v5, {sp(S_X)}
      s_mov_b64 exec, 0xff
      global_load_dwordx4 {vr(20)}, v5, {sp(S_X)} offset:1024
      s_mov_b64 exec, -1
      s_load_dword s48, {sp(S_WS)}, {WS_EPOCH}
      s_waitcnt vmcnt(0)""")
    for i in range(8):
        A(f"v_lshlrev_b32 v{24+2*i}, 16, v{16+i}\n v_and_b32 v{25+2*i}, 0xffff0000, v{16+i}")
    A("v_add_f32 v40, v24, v25")
    for i in range(26, 40): A(f"v_add_f32 v40, v40, v{i}")
    rowred("add", 40); crossrow("add", 40, 41)
    A(f"v_mul_f32 v40, {f2u(1.0/576):#x}, v40")
    A("v_sub_f32 v42, v24, v40\n v_mul_f32 v41, v42, v42")
    for i in range(25, 32):
        A(f"v_sub_f32 v42, v{i}, v40\n v_fmac_f32 v41, v42, v42")
    A("s_mov_b64 exec, 0xff")
    for i in range(32, 40):
        A(f"v_sub_f32 v42, v{i}, v40\n v_fmac_f32 v41, v42, v42")
    A("s_mov_b64 exec, -1")
    rowred("add", 41); crossrow("add", 41, 42)
    A(f"v_mul_f32 v41, {f2u(1.0/576):#x}, v41")
    rne(40, 40); rne(41, 41)
    A(f"v_add_f32 v41, {f2u(1e-5):#x}, v41")
    rne(41, 41)
    A("v_sqrt_f32 v41, v41")
    rne(41, 41)
    A("v_rcp_f32 v41, v41")
    for i in range(8):
        a, b = 24+2*i, 25+2*i
        A(f"""v_sub_f32 v{a}, v{a}, v40
          v_sub_f32 v{b}, v{b}, v40
          v_cvt_pk_bf16_f32 v{a}, v{a}, v{b}
          v_and_b32 v{b}, 0xffff0000, v{a}
          v_lshlrev_b32 v{a}, 16, v{a}
          v_mul_f32 v{a}, v{a}, v41
          v_mul_f32 v{b}, v{b}, v41
          v_cvt_pk_bf16_f32 v{16+i}, v{a}, v{b}""")
    A(f"""ds_write_b128 v5, {vr(16)} offset:{L_XN}
      s_mov_b64 exec, 0xff
      ds_write_b128 v5, {vr(20)} offset:{L_XN+1024}
      s_mov_b64 exec, -1
      s_waitcnt lgkmcnt(0)
      s_add_u32 s48, s48, {PHI}
      v_mov_b32 v14, s48
      v_mov_b32 v6, {L_TAG}
      ds_write_b32 v6, v14""")
    lds_set(F_XN)
    stamp(2)
    A(f"""s_lshl_b32 s45, s{S_H}, 13
      s_add_u32 s45, s45, {WS_QP}
      v_lshlrev_b32 v7, 4, v0
      v_add_u32 v7, s45, v7
      v_add_u32 v8, 4096, v7""")
    A.label("L_QSW")
    for r in range(4):
        for hh in range(2):
            off = r*2048 + hh*1024
            A(f"global_load_dwordx4 {vr(16+(r*2+hh)*4)}, v{7 if off < 4096 else 8}, {sp(S_WS)} offset:{off & 4095} sc1")
    A("s_waitcnt vmcnt(0)")
    tagcheck(14, [16+4*i+1 for i in range(8)] + [16+4*i+3 for i in range(8)], 48, 49, 50, "L_QSW")
    for hh in range(2):
        for e in (0, 2):
            d = 52+hh*2+e//2
            A(f"v_add_f32 v{d}, v{16+hh*4+e}, v{16+(2+hh)*4+e}")
            A(f"v_add_f32 v{d}, v{d}, v{16+(4+hh)*4+e}")
            A(f"v_add_f32 v{d}, v{d}, v{16+(6+hh)*4+e}")
    A("v_cvt_pk_bf16_f32 v52, v52, v53\n v_cvt_pk_bf16_f32 v54, v54, v55")
    A(f"""v_lshrrev_b32 v9, 5, v0
      v_lshlrev_b32 v9, 7, v9
      v_lshl_add_u32 v9, v4, 4, v9
      v_bfe_u32 v10, v0, 3, 2
      v_lshl_add_u32 v9, v10, 2, v9
      ds_write_b32 v9, v52 offset:{L_Q}
      ds_write_b32 v9, v54 offset:{L_Q+256}""")
    lds_set(F_Q)
    stamp(3)
    A(f"""s_lshl_b32 s45, s{S_RBO}, 13
      s_add_u32 s45, s45, {WS_OP}
      v_lshlrev_b32 v7, 3, v0
      v_add_u32 v7, s45, v7
      v_add_u32 v8, 4096, v7
      s_lshr_b32 s45, s{S_RBO}, 1
      s_lshl_b32 s45, s45, 8
      s_add_u32 s45, s45, {WS_OS}
      v_lshlrev_b32 v9, 4, v2
      v_add_u32 v9, s45, v9""")
    A.label("L_OSW")
    A(f"global_load_dwordx4 {vr(48)}, v9, {sp(S_WS)} sc1")
    for s in range(16):
        off = s*512
        A(f"global_load_dwordx2 v[{16+2*s}:{17+2*s}], v{7 if off < 4096 else 8}, {sp(S_WS)} offset:{off & 4095} sc1")
    A("s_waitcnt vmcnt(0)")
    tagcheck(14, [49, 51] + [17+2*s for s in range(16)], 52, 53, 54, "L_OSW")
    stamp(4)
    A("v_mov_b32 v52, v48")
    rowred("max", 52)
    A("v_sub_f32 v52, v48, v52\n v_exp_f32 v52, v52\n v_mul_f32 v53, v52, v50")
    rowred("add", 53)
    A("v_rcp_f32 v53, v53\n v_mul_f32 v52, v52, v53")
    for s in range(16):
        A(f"v_readlane_b32 s{48+s}, v52, {s}")
    A("v_mul_f32 v55, s48, v16")
    for s in range(1, 16):
        A(f"v_fmac_f32 v55, s{48+s}, v{16+2*s}")
    A(f"""v_cvt_pk_bf16_f32 v55, v55, v55
      v_lshrrev_b32 v9, 3, v0
      v_lshl_add_u32 v9, v4, 3, v9
      v_lshlrev_b32 v9, 1, v9
      ds_write_b16 v9, v55 offset:{L_O}""")
    lds_set(F_O)
    stamp(5)
    A(f"""s_cmp_ge_u32 s{S_KK}, 27
      s_cbranch_scc1 L_DONE
      s_mul_i32 s45, s{S_CB}, 3072
      s_add_u32 s45, s45, {WS_HP}
      v_lshlrev_b32 v7, 4, v0
      v_add_u32 v7, s45, v7""")
    A.label("L_HSW")
    for r in range(3):
        A(f"global_load_dwordx4 {vr(16+4*r)}, v7, {sp(S_WS)} offset:{r*1024} sc1")
    A("s_waitcnt vmcnt(0)")
    tagcheck(14, [17, 19, 21, 23, 25, 27], 52, 53, 54, "L_HSW")
    stamp(6)
    A("""v_add_f32 v16, v16, v20
      v_add_f32 v18, v18, v22
      v_add_f32 v16, v16, v24
      v_add_f32 v18, v18, v26""")
    rne(16, 16); rne(18, 18)
    silu(16, 20)
    rne(16, 16)
    A(f"""v_mul_f32 v16, v16, v18
      v_cvt_pk_bf16_f32 v16, v16, v16
      v_lshlrev_b32 v9, 1, v0
      ds_write_b16 v9, v16 offset:{L_H}""")
    lds_set(F_H)
    stamp(7)
    A("s_branch L_DONE")

    A.label("L_GV")
    A(f"""s_sub_u32 s50, s{S_W}, 2
      s_cmp_ge_u32 s{S_KK}, 27
      s_cbranch_scc1 L_GVB""")
    row_of_lane(5)
    A(f"""s_lshr_b32 s44, s50, 1
      s_mul_i32 s45, s{S_RT}, 3
      s_add_u32 s45, s45, s44
      s_lshl_b32 s51, s45, 6
      v_add_u32 v5, s51, v5
      s_mov_b32 s44, 9216
      v_mul_lo_u32 v9, v5, s44
      v_lshl_add_u32 v9, v4, 4, v9
      s_lshl_b32 s44, s{S_CB}, 7
      v_add_u32 v9, s44, v9
      s_bitcmp1_b32 s50, 0
      s_cselect_b32 s48, s{S_WU}, s{S_WG}
      s_cselect_b32 s49, s{S_WU+1}, s{S_WG+1}""")
    arow_of_lane(10)
    A("v_add_u32 v10, s51, v10\n v_lshlrev_b32 v10, 1, v10")
    lds_wait(C_VISS, 8, vtmp=7, vaddr=8)
    stamp(2)
    for i in range(8):
        A(f"global_load_dwordx4 {vr(TILE+4*i)}, v9, s[48:49]{NT}")
        if i < 7: A("v_add_u32 v9, 9216, v9")
    lds_wait(F_XN, vtmp=7, vaddr=8)
    A(f"ds_read_b128 {vr(AF)}, v10 offset:{L_XN}\n s_waitcnt vmcnt(0) lgkmcnt(0)")
    stamp(3)
    mma8(TILE, AF, ACC, True)
    for dd in range(8):
        A(f"v_add_f32_dpp v{TILE+dd}, v{ACC+dd*4+1}, v{ACC+dd*4} row_ror:8 row_mask:0xf bank_mask:0xf")
    A(f"""s_lshl_b32 s44, s50, 8
      v_lshlrev_b32 v6, 5, v4
      v_add_u32 v6, s44, v6
      s_mov_b64 exec, 0xff
      ds_write_b128 v6, {vr(TILE)} offset:{L_GU}
      ds_write_b128 v6, {vr(TILE+4)} offset:{L_GU+16}
      s_mov_b64 exec, -1""")
    lds_count(C_GU)
    A(f"""s_cmp_lg_u32 s44, 5
      s_cbranch_scc1 L_DONE
      v_lshlrev_b32 v6, 2, v0""")
    for v in range(6):
        A(f"ds_read_b32 v{16+v}, v6 offset:{L_GU+v*256}")
    A(f"""v_mov_b32 v7, {L_TAG}
      ds_read_b32 v25, v7
      s_mul_i32 s44, s{S_CB}, 3
      s_add_u32 s44, s44, s{S_RT}
      s_lshl_b32 s44, s44, 10
      s_add_u32 s44, s44, {WS_HP}
      v_lshlrev_b32 v6, 4, v0
      v_add_u32 v6, s44, v6
      s_waitcnt lgkmcnt(0)
      v_add_f32 v24, v16, v18
      v_add_f32 v26, v17, v19
      v_add_f32 v24, v24, v20
      v_add_f32 v26, v26, v21
      v_mov_b32 v27, v25
      global_store_dwordx4 v6, {vr(24)}, {sp(S_WS)} sc1""")
    stamp(4)
    A("s_branch L_DONE")
    A.label("L_GVB")
    lds_wait(C_VISS, 8, vtmp=7, vaddr=8)
    stamp(2)
    tile1152(None, 50, S_WO, WS_PO, S_RBO, F_O, L_O)
    A("s_mov_b32 s55, 0\n s_branch L_TASK2")

    A.label("L_ATT")
    A(f"""s_sub_u32 s50, s{S_W}, 8
      s_lshl_b32 s44, s{S_H}, 24
      s_lshl_b32 s45, s{S_S}, 8
      s_lshl_b32 s46, s50, 5
      s_add_u32 s45, s45, s46
      s_add_u32 s45, s45, 61440
      s_lshl_b32 s45, s45, 8
      s_add_u32 s44, s44, s45
      s_add_u32 s56, s{S_K}, s44
      s_addc_u32 s57, s{S_K+1}, 0
      s_add_u32 s58, s{S_V}, s44
      s_addc_u32 s59, s{S_V+1}, 0
      v_lshlrev_b32 v5, 8, v2
      v_lshl_add_u32 v5, v1, 4, v5
      v_add_u32 v6, 4096, v5
      v_lshlrev_b32 v7, 10, v1
      v_lshl_add_u32 v7, v2, 4, v7
      v_add_u32 v8, 4096, v7""")
    for t in range(2):
        for i in range(4):
            A(f"global_load_dwordx4 {vr(16+(t*4+i)*4)}, v{5+t}, s[56:57] offset:{i*64}{NT}")
    for i in range(8):
        A(f"global_load_dwordx4 {vr(48+i*4)}, v{7+(i>>2)}, s[58:59] offset:{(i&3)*256}{NT}")
    lds_count(C_VISS)
    stamp(2)
    lds_wait(F_Q)
    stamp(3)
    A(f"""v_and_b32 v5, 1, v0
      v_lshlrev_b32 v5, 8, v5
      v_lshl_add_u32 v5, v1, 4, v5""")
    for i in range(4):
        A(f"ds_read_b128 {vr(80+4*i)}, v5 offset:{L_Q+64*i}")
    A("s_waitcnt vmcnt(8) lgkmcnt(0)")
    for i in range(4):
        for t in range(2):
            c = "0" if i == 0 else vr(112+4*t)
            A(f"v_mfma_f32_16x16x32_bf16 {vr(112+4*t)}, {vr(16+(t*4+i)*4)}, {vr(80+4*i)}, {c}")
    A("""v_max3_f32 v9, v112, v113, v114
      v_max3_f32 v9, v9, v115, v116
      v_max3_f32 v9, v9, v117, v118
      v_max_f32 v9, v9, v119""")
    crossrow("max", 9, 10)
    A(f"s_mov_b32 s44, {f2u(CSC):#x}\n v_mul_f32 v9, s44, v9")
    for r in range(8):
        A(f"v_fma_f32 v{112+r}, v{112+r}, s44, -v9\n v_exp_f32 v{112+r}, v{112+r}")
    A("v_add_f32 v10, v112, v113")
    for r in range(2, 8): A(f"v_add_f32 v10, v10, v{112+r}")
    for p in range(4):
        A(f"v_cvt_pk_bf16_f32 v{120+p}, v{112+2*p}, v{113+2*p}")
    crossrow("add", 10, 11)
    A("v_mov_b32 v12, v9\n v_mov_b32 v13, v10")
    stamp(4)
    A(f"""s_mov_b32 s55, 0
      s_cmp_ge_u32 s{S_KK}, 27
      s_cbranch_scc1 L_AT2B
      s_cmp_gt_u32 s50, 3
      s_cbranch_scc1 L_AT2N
      s_mov_b32 s51, s{S_LINE}
      s_cmp_eq_u32 s50, 3
      s_cbranch_scc1 L_AT2WO
      s_mul_i32 s51, s{S_RT}, 3
      s_add_u32 s51, s51, s50""")
    tile1152(None, 51, S_WD, WS_PD, S_CB, F_H, L_H)
    A("s_mov_b32 s55, 1\n s_waitcnt vmcnt(8)\n s_branch L_PV")
    A.label("L_AT2B")
    A(f"""s_cmp_gt_u32 s50, 2
      s_cbranch_scc1 L_AT2N
      s_add_u32 s51, s50, 6""")
    A.label("L_AT2WO")
    tile1152(None, 51, S_WO, WS_PO, S_RBO, F_O, L_O)
    A("s_mov_b32 s55, 1\n s_waitcnt vmcnt(8)\n s_branch L_PV")
    A.label("L_AT2N")
    A("s_waitcnt vmcnt(0)")
    A.label("L_PV")
    stamp(5)
    mma8(48, 120, ACC, True)
    A(f"""s_lshl_b32 s44, s50, 10
      s_add_u32 s44, s44, {L_ATT}
      v_bfe_u32 v5, v0, 1, 2
      v_lshlrev_b32 v5, 4, v5
      v_lshl_add_u32 v5, v3, 3, v5
      v_and_b32 v6, 1, v0
      v_lshl_add_u32 v5, v6, 2, v5
      v_add_u32 v5, s44, v5
      s_lshl_b32 s44, s50, 3
      v_lshlrev_b32 v6, 6, v6
      v_add_u32 v6, s44, v6
      s_mov_b64 exec, 0xffff""")
    for dd in range(8):
        A(f"ds_write2_b32 v5, v{ACC+dd*4}, v{ACC+dd*4+1} offset0:{dd*16} offset1:{128+dd*16}")
    A(f"""s_mov_b64 exec, 3
      ds_write_b64 v6, v[12:13] offset:{L_ST}
      s_mov_b64 exec, -1""")
    lds_count(C_ATT)
    A(f"""s_cmp_lg_u32 s44, 7
      s_cbranch_scc1 L_ATC
      v_lshlrev_b32 v5, 4, v0
      v_lshrrev_b32 v6, 5, v0
      v_lshlrev_b32 v7, 6, v6""")
    for w in range(8):
        A(f"ds_read_b128 {vr(48+4*w)}, v5 offset:{L_ATT+w*1024}")
    for i in range(4):
        A(f"ds_read_b128 {vr(80+4*i)}, v7 offset:{L_ST+16*i}")
    A(f"""v_mov_b32 v8, {L_TAG}
      ds_read_b32 v101, v8
      s_lshl_b32 s44, s{S_H}, 2
      s_lshl_b32 s44, s44, 13
      s_lshl_b32 s45, s{S_S}, 9
      s_add_u32 s44, s44, s45
      s_add_u32 s44, s44, {WS_OP}
      v_lshlrev_b32 v9, 14, v6
      v_and_b32 v10, 31, v0
      v_lshl_add_u32 v9, v10, 4, v9
      v_add_u32 v9, s44, v9
      v_add_u32 v10, 8192, v9
      s_lshl_b32 s44, s{S_H}, 9
      s_lshl_b32 s45, s{S_S}, 4
      s_add_u32 s44, s44, s45
      s_add_u32 s44, s44, {WS_OS}
      v_lshlrev_b32 v11, 8, v6
      v_add_u32 v11, s44, v11
      s_waitcnt lgkmcnt(0)
      v_max3_f32 v96, v80, v82, v84
      v_max3_f32 v96, v96, v86, v88
      v_max3_f32 v96, v96, v90, v92
      v_max_f32 v96, v96, v94""")
    for w in range(8):
        A(f"v_sub_f32 v{80+2*w}, v{80+2*w}, v96\n v_exp_f32 v{80+2*w}, v{80+2*w}")
    A("v_mul_f32 v98, v80, v81")
    for w in range(1, 8): A(f"v_fmac_f32 v98, v{80+2*w}, v{81+2*w}")
    for e in range(4):
        A(f"v_mul_f32 v{100+2*e}, v80, v{48+e}")
    for w in range(1, 8):
        for e in range(4):
            A(f"v_fmac_f32 v{100+2*e}, v{80+2*w}, v{48+4*w+e}")
    A(f"""v_mov_b32 v103, v101
      v_mov_b32 v105, v101
      v_mov_b32 v107, v101
      v_mov_b32 v97, v101
      v_mov_b32 v99, v101
      global_store_dwordx4 v9, {vr(100)}, {sp(S_WS)} sc1
      global_store_dwordx4 v10, {vr(104)}, {sp(S_WS)} sc1
      s_mov_b32 s46, 1
      s_mov_b32 s47, 1
      s_mov_b64 exec, s[46:47]
      global_store_dwordx4 v11, {vr(96)}, {sp(S_WS)} sc1
      s_mov_b64 exec, -1""")
    A.label("L_ATC")
    stamp(6)
    A("s_cmp_eq_u32 s55, 0\n s_cbranch_scc1 L_FINCHK")

    A.label("L_TASK2")
    arow_of_lane(5)
    A(f"""v_lshlrev_b32 v10, 1, v5
      v_add_u32 v10, s53, v10
      v_lshlrev_b32 v9, 7, v1
      v_lshl_add_u32 v9, v4, 4, v9
      v_add_u32 v9, s54, v9
      v_mov_b32 v6, s52""")
    lw = L("W"); ld = L("WD")
    A.label(lw)
    A(f"""ds_read_b32 v5, v6
      s_waitcnt lgkmcnt(0)
      v_readfirstlane_b32 s44, v5
      s_cmp_lg_u32 s44, 0
      s_cbranch_scc1 {ld}
      s_sleep 1
      s_sub_u32 s79, s79, 1
      s_cbranch_scc0 {lw}
      s_branch L_DONE""")
    A.label(ld)
    stamp(7)
    A(f"""ds_read_b128 {vr(AF)}, v10
      v_mov_b32 v5, {L_TAG}
      ds_read_b32 v{DD+1}, v5
      s_waitcnt vmcnt(0) lgkmcnt(0)""")
    mma8(TILE, AF, ACC, True)
    publish64(ACC, 9, S_WS)
    stamp(8)
    A("s_cmp_eq_u32 s55, 0\n s_cbranch_scc1 L_DONE")

    A.label("L_FINCHK")
    A(f"""s_cmp_lt_u32 s2, 216
      s_cbranch_scc1 L_DONE""")
    A(f"""s_sub_u32 s60, s{S_KK}, 27
      s_lshl_b32 s60, s60, 3
      s_add_u32 s60, s60, s{S_XC}
      s_cmp_ge_u32 s60, 36
      s_cbranch_scc1 L_DONE
      s_lshl_b32 s61, s60, 7
      v_lshrrev_b32 v5, 3, v0
      s_lshl_b32 s44, s50, 3
      v_add_u32 v6, s44, v5
      v_mul_u32_u24 v6, 4608, v6
      v_lshl_add_u32 v6, v4, 4, v6
      v_add_u32 v6, s61, v6
      v_add_u32 v6, {WS_PO}, v6
      s_mul_i32 s44, s50, 9
      v_add_u32 v7, s44, v5
      v_mul_u32_u24 v7, 4608, v7
      v_lshl_add_u32 v7, v4, 4, v7
      v_add_u32 v7, s61, v7
      v_add_u32 v7, {WS_PD}, v7
      s_add_u32 s44, s44, 8
      s_mul_i32 s44, s44, 4608
      s_add_u32 s44, s44, s61
      s_add_u32 s44, s44, {WS_PD}
      v_lshlrev_b32 v8, 4, v4
      v_add_u32 v8, s44, v8
      v_mov_b32 v9, {L_TAG}
      ds_read_b32 v14, v9
      s_lshr_b32 s62, s60, 2
      s_lshl_b32 s62, s62, 7
      s_and_b32 s44, s60, 3
      s_lshl_b32 s44, s44, 2
      s_add_u32 s62, s62, s44
      v_lshlrev_b32 v10, 4, v4
      v_add_u32 v10, s62, v10
      global_load_dword v15, v10, {sp(S_X)}
      s_waitcnt lgkmcnt(0)
      v_mov_b32 v24, 0
      v_mov_b32 v25, v14
      v_mov_b32 v26, 0
      v_mov_b32 v27, v14""")
    A.label("L_FSW")
    A(f"""global_load_dwordx4 {vr(16)}, v6, {sp(S_WS)} sc1
      global_load_dwordx4 {vr(20)}, v7, {sp(S_WS)} sc1
      s_mov_b64 exec, 0xff
      global_load_dwordx4 {vr(24)}, v8, {sp(S_WS)} sc1
      s_mov_b64 exec, -1
      s_waitcnt vmcnt(0)""")
    tagcheck(14, [17, 19, 21, 23, 25, 27], 28, 29, 30, "L_FSW")
    stamp(9)
    A(f"""v_add_f32 v20, v20, v24
      v_add_f32 v22, v22, v26
      v_lshlrev_b32 v9, 4, v4
      ds_add_f32 v9, v16 offset:{L_FACC}
      ds_add_f32 v9, v18 offset:{L_FACC+4}
      ds_add_f32 v9, v20 offset:{L_FACC+8}
      ds_add_f32 v9, v22 offset:{L_FACC+12}""")
    lds_count(C_FIN)
    A(f"""s_cmp_lg_u32 s44, 7
      s_cbranch_scc1 L_DONE
      ds_read_b128 {vr(16)}, v9 offset:{L_FACC}
      s_waitcnt lgkmcnt(0)""")
    for e in range(2):
        rne(16+e, 16+e); rne(18+e, 18+e)
        silu(18+e, 20)
        rne(18+e, 18+e)
        A(f"v_mul_f32 v{16+e}, v{16+e}, v{18+e}")
        rne(16+e, 16+e)
    A(f"""v_lshlrev_b32 v20, 16, v15
      v_and_b32 v21, 0xffff0000, v15
      v_add_f32 v16, v16, v20
      v_add_f32 v17, v17, v21
      v_cvt_pk_bf16_f32 v16, v16, v17
      s_mov_b64 exec, 0xff
      global_store_dword v10, v16, {sp(S_OUT)}
      s_mov_b64 exec, -1
      s_cmp_lg_u32 s60, 0
      s_cbranch_scc1 L_DONE
      v_mov_b32 v5, {WS_EPOCH}
      s_mov_b64 exec, 1
      global_store_dword v5, v14, {sp(S_WS)}
      s_mov_b64 exec, -1""")
    A.label("L_DONE")
    if stamps:
        A(f"""s_memrealtime s[100:101]
          s_lshl_b32 s44, s2, 4
          s_add_u32 s44, s44, s{S_W}
          s_lshl_b32 s44, s44, 7
          s_add_u32 s44, s44, {STAMP}
          s_add_u32 s44, s{S_WS}, s44
          s_addc_u32 s45, s{S_WS+1}, 0
          s_waitcnt lgkmcnt(0)
          v_mov_b32 v5, 0""")
        for i in range(11):
            A(f"v_mov_b32 v6, s{80+2*i}\n v_mov_b32 v7, s{81+2*i}\n global_store_dwordx2 v5, v[6:7], s[44:45] offset:{i*8}")
    A.label("L_END")
    A("s_endpgm")
    body, npad = A.finish()
    name = NAME + "_kernel"
    s = HDR + f"; @launch grid=(256,1,1) block=(1024,1,1) lds={LDS_BYTES}\n"
    s += '.amdgcn_target "amdgcn-amd-amdhsa--gfx950"\n.text\n'
    s += f".globl {name}\n.p2align 8\n.type {name},@function\n{name}:\n" + body
    s += '.section .rodata,"a"\n.p2align 6\n'
    s += f".amdhsa_kernel {name}\n  .amdhsa_next_free_vgpr 128\n  .amdhsa_next_free_sgpr 102\n  .amdhsa_accum_offset 128\n"
    s += "  .amdhsa_group_segment_fixed_size 0\n  .amdhsa_kernarg_size 96\n  .amdhsa_user_sgpr_count 2\n  .amdhsa_user_sgpr_kernarg_segment_ptr 1\n  .amdhsa_system_sgpr_workgroup_id_x 1\n.end_amdhsa_kernel\n"
    return s, npad

if __name__ == "__main__":
    s, n = gen(stamps=False); open("k1.s", "w").write(s); print("pads", n)
    s, n = gen(stamps=True); open("k1s.s", "w").write(s)
```

```python
import sys, struct
from hz import Asm
from asmlib import HDR, NAME

PHI = 0x9E3779B9
WS_EPOCH = 0
WS_QP = 0x10000
WS_OS = 0x38000
WS_OP = 0x40000
WS_HP = 0xC0000
WS_PD = 0x100000
WS_PO = 0x160000
STAMP = 0x30000000
F_XN, F_Q, C_ATT, C_GU, C_VISS, F_O, F_H, C_FIN, L_TAG, F_QP, F_OP, F_GP = 0, 4, 8, 12, 16, 20, 24, 28, 32, 36, 40, 44
L_FACC = 64
L_XN = 0x100; L_Q = 0x600; L_O = 0x800; L_H = 0x880; L_GU = 0x900; L_ATT = 0x1000; L_ST = 0x3000
LDS_BYTES = 0x3100
CSC = 0.08838834764831845 * 1.4426950408889634
LOG2E = 1.4426950408889634
def f2u(x): return struct.unpack('<I', struct.pack('<f', x))[0]

S_X, S_K, S_V, S_WQ, S_WO, S_BX, S_WG, S_WU, S_WD, S_OUT, S_DBG, S_WS = 8, 10, 12, 14, 16, 18, 20, 22, 24, 26, 28, 30
S_W, S_H, S_S, S_XC, S_KK, S_PLO, S_PHI = 32, 33, 34, 35, 36, 38, 39
S_CB, S_RT, S_RBO, S_LINE = 40, 41, 42, 43
TILE = 16; ACC = 80; TMP = 112; AF = 120; DD = 124

def gen(stamps=False, nt=True, opts=None):
    opts = opts or {}
    NT = " nt" if nt else ""
    WIN = opts.get("win", None)
    def throttle(n_issued_before):
        if WIN is not None and n_issued_before >= WIN:
            A(f"s_waitcnt vmcnt({WIN-1})")
    A = Asm()
    sp = lambda n: f"s[{n}:{n+1}]"
    vr = lambda n, k=4: f"v[{n}:{n+k-1}]"
    uid = [0]
    def L(p="L"):
        uid[0] += 1; return f"{p}_{uid[0]}"
    def stamp(i):
        if stamps: A(f"s_memrealtime s[{80+2*i}:{81+2*i}]")
    def lds_wait(addr, val=None, vtmp=5, vaddr=6):
        l = L("W"); d = L("WD")
        A(f"v_mov_b32 v{vaddr}, {addr}")
        A.label(l)
        A(f"ds_read_b32 v{vtmp}, v{vaddr}")
        A("s_waitcnt lgkmcnt(0)")
        A(f"v_readfirstlane_b32 s44, v{vtmp}")
        A("s_cmp_lg_u32 s44, 0" if val is None else f"s_cmp_eq_u32 s44, {val}")
        A(f"s_cbranch_scc1 {d}")
        A("s_sleep 1")
        A("s_sub_u32 s79, s79, 1")
        A(f"s_cbranch_scc0 {l}")
        A("s_branch L_DONE")
        A.label(d)
    def lds_set(addr, vt=5, va=6):
        A(f"s_waitcnt lgkmcnt(0)\n v_mov_b32 v{va}, {addr}\n v_mov_b32 v{vt}, 1\n ds_write_b32 v{va}, v{vt}")
    def lds_count(addr, vt=5, va=6):
        A(f"""s_waitcnt lgkmcnt(0)
          v_mov_b32 v{va}, {addr}
          v_mov_b32 v{vt}, 1
          s_mov_b64 exec, 1
          ds_add_rtn_u32 v{vt}, v{va}, v{vt}
          s_waitcnt lgkmcnt(0)
          v_readfirstlane_b32 s44, v{vt}
          s_mov_b64 exec, -1""")
    def mma8(tile, af, acc, first, sets=(TMP, TMP+4)):
        def P(dd):
            t = sets[dd & 1]
            sel = S_PLO if (dd & 1) == 0 else S_PHI
            for p in range(4):
                A(f"v_perm_b32 v{t+p}, v{tile+(2*p+1)*4+(dd>>1)}, v{tile+(2*p)*4+(dd>>1)}, s{sel}")
        def M(dd):
            t = sets[dd & 1]
            c = "0" if first else vr(acc+dd*4)
            A(f"v_mfma_f32_16x16x32_bf16 {vr(acc+dd*4)}, {vr(af)}, {vr(t)}, {c}")
        P(0); P(1)
        for dd in range(8):
            M(dd)
            if dd+2 < 8: P(dd+2)
    def publish64(acc, voff, base_s):
        for k in range(4):
            A(f"v_add_f32_dpp v{DD}, v{acc+(2*k)*4+1}, v{acc+(2*k)*4} row_ror:8 row_mask:{1<<k:#x} bank_mask:0xf")
            A(f"v_add_f32_dpp v{DD+2}, v{acc+(2*k+1)*4+1}, v{acc+(2*k+1)*4} row_ror:8 row_mask:{1<<k:#x} bank_mask:0xf")
        A(f"v_mov_b32 v{DD+3}, v{DD+1}")
        A("s_mov_b32 s46, 0x00ff00ff\n s_mov_b32 s47, 0x00ff00ff\n s_mov_b64 exec, s[46:47]")
        A(f"global_store_dwordx4 v{voff}, {vr(DD)}, {sp(base_s)} sc1")
        A("s_mov_b64 exec, -1")
    def rowred(op, v):
        for r in (8, 4, 2, 1):
            A(f"v_{op}_f32_dpp v{v}, v{v}, v{v} row_ror:{r} row_mask:0xf bank_mask:0xf")
    def crossrow(op, v, t):
        A(f"v_mov_b32 v{t}, v{v}\n v_permlane16_swap_b32 v{v}, v{t}\n v_{op}_f32 v{v}, v{v}, v{t}")
        A(f"v_mov_b32 v{t}, v{v}\n v_permlane32_swap_b32 v{v}, v{t}\n v_{op}_f32 v{v}, v{v}, v{t}")
    def rne(dst, src):
        A(f"v_cvt_pk_bf16_f32 v{dst}, v{src}, v{src}\n v_lshlrev_b32 v{dst}, 16, v{dst}")
    def silu(v, t):
        A(f"""v_mul_f32 v{t}, {f2u(-LOG2E):#x}, v{v}
          v_exp_f32 v{t}, v{t}
          v_add_f32 v{t}, 1.0, v{t}
          v_rcp_f32 v{t}, v{t}
          v_mul_f32 v{v}, v{v}, v{t}""")
    def tagcheck(tagv, regs, acc, t1, t2, retry):
        first = True
        for i in range(0, len(regs), 2):
            A(f"v_xor_b32 v{t1}, v{tagv}, v{regs[i]}")
            if i+1 < len(regs):
                A(f"v_xor_b32 v{t2}, v{tagv}, v{regs[i+1]}")
                A(f"v_or_b32 v{acc}, v{t1}, v{t2}" if first else f"v_or3_b32 v{acc}, v{acc}, v{t1}, v{t2}")
            else:
                A(f"v_mov_b32 v{acc}, v{t1}" if first else f"v_or_b32 v{acc}, v{acc}, v{t1}")
            first = False
        ok = L("OK")
        A(f"v_cmp_ne_u32 vcc, 0, v{acc}")
        A(f"s_cbranch_vccz {ok}")
        A("s_sub_u32 s79, s79, 1")
        A(f"s_cbranch_scc0 {retry}")
        A("s_branch L_DONE")
        A.label(ok)
    def row_of_lane(dst):
        A(f"v_lshlrev_b32 v{dst}, 5, v3\n v_lshl_add_u32 v{dst}, v1, 3, v{dst}")
    def arow_of_lane(dst):
        A(f"v_and_b32 v{dst}, 1, v0\n v_lshlrev_b32 v{dst}, 5, v{dst}\n v_lshl_add_u32 v{dst}, v1, 3, v{dst}")
    def tile1152(rowbase_s, line_s, wbase, outbase, rb_s, flag, vec):
        row_of_lane(5)
        A(f"""s_lshl_b32 s44, s{rb_s}, 6
          v_add_u32 v6, s44, v5
          v_mul_u32_u24 v6, 1152, v6
          v_lshl_add_u32 v6, v4, 4, v6
          s_lshl_b32 s44, s{line_s}, 7
          v_add_u32 v6, s44, v6
          v_add_u32 v7, 4608, v6""")
        for i in range(8):
            A(f"global_load_dwordx4 {vr(TILE+4*i)}, v{6+(i>>2)}, {sp(wbase)} offset:{(i&3)*1152}{NT}")
        A(f"""s_mul_i32 s54, s{rb_s}, 4608
          s_lshl_b32 s44, s{line_s}, 9
          s_add_u32 s54, s54, s44
          s_add_u32 s54, s54, {outbase}
          s_mov_b32 s52, {flag}
          s_mov_b32 s53, {vec}""")

    stamp(0)
    A(f"""s_cmp_ge_u32 s2, 256
      s_cbranch_scc1 L_END
      s_load_dwordx16 s[8:23], s[0:1], 0
      s_load_dwordx8 s[24:31], s[0:1], 64
      v_lshrrev_b32 v1, 6, v0
      v_and_b32 v0, 63, v0
      v_readfirstlane_b32 s{S_W}, v1
      s_and_b32 s{S_XC}, s2, 7
      s_lshr_b32 s{S_KK}, s2, 3
      s_lshr_b32 s{S_H}, s2, 7
      s_lshl_b32 s{S_H}, s{S_H}, 3
      s_add_u32 s{S_H}, s{S_H}, s{S_XC}
      s_and_b32 s{S_S}, s{S_KK}, 15
      s_mov_b32 s79, 100000
      s_mov_b32 s{S_PLO}, 0x05040100
      s_mov_b32 s{S_PHI}, 0x07060302
      v_mov_b32 v5, 0
      v_lshlrev_b32 v6, 2, v0
      ds_write_b32 v6, v5
      v_lshrrev_b32 v1, 4, v0
      v_and_b32 v2, 15, v0
      v_bfe_u32 v3, v0, 3, 1
      v_and_b32 v4, 7, v0
      s_mul_i32 s44, s{S_KK}, 11
      s_lshr_b32 s44, s44, 5
      s_mul_i32 s45, s44, 3
      s_sub_u32 s{S_RT}, s{S_KK}, s45
      s_mul_i32 s{S_CB}, s{S_XC}, 9
      s_add_u32 s{S_CB}, s{S_CB}, s44
      s_mul_i32 s44, s{S_KK}, 57
      s_lshr_b32 s44, s44, 9
      s_mul_i32 s45, s44, 9
      s_sub_u32 s{S_LINE}, s{S_KK}, s45
      s_add_u32 s44, s44, 5
      s_sub_u32 s45, s{S_KK}, 27
      s_cmp_lt_u32 s{S_KK}, 27
      s_cselect_b32 s44, s44, s45
      s_lshl_b32 s45, s{S_XC}, 2
      s_add_u32 s45, s45, s44
      s_add_u32 s46, s45, 28
      s_cmp_lt_u32 s44, 4
      s_cselect_b32 s{S_RBO}, s45, s46
      s_waitcnt lgkmcnt(0)
      s_cmp_lt_u32 s{S_W}, 2
      s_cbranch_scc1 L_W01
      s_barrier""")
    stamp(1)
    A(f"""s_cmp_ge_u32 s{S_W}, 8
      s_cbranch_scc1 L_ATT
      s_branch L_GV""")
    A.label("L_W01")
    A(f"""s_setprio 3
      s_cmp_eq_u32 s{S_W}, 1
      s_cbranch_scc1 L_W1""")

    A(f"""s_lshr_b32 s44, s{S_S}, 2
      s_mul_i32 s48, s44, 144
      s_lshl_b32 s45, s48, 13
      s_lshl_b32 s46, s{S_H}, 9
      s_add_u32 s45, s45, s46
      s_and_b32 s46, s{S_S}, 3
      s_lshl_b32 s46, s46, 7
      s_add_u32 s45, s45, s46""")
    row_of_lane(5)
    A(f"""v_lshlrev_b32 v6, 13, v5
      v_lshl_add_u32 v6, v4, 4, v6
      v_add_u32 v6, s45, v6""")
    for i in range(8):
        A(f"global_load_dwordx4 {vr(16+4*i)}, v6, {sp(S_WQ)}{NT}")
        A(f"v_add_u32 v6, {8192 if i < 7 else 57*8192}, v6")
    for i in range(8):
        A(f"global_load_dwordx4 {vr(48+4*i)}, v6, {sp(S_WQ)}{NT}")
        if i < 7: A("v_add_u32 v6, 8192, v6")
    A(f"""v_lshlrev_b32 v7, 3, v3
      v_lshl_add_u32 v7, v1, 1, v7
      v_add_u32 v8, 128, v7
      v_lshlrev_b32 v8, 13, v8
      v_lshl_add_u32 v8, v4, 4, v8
      v_add_u32 v8, s45, v8""")
    A(f"global_load_dwordx4 {vr(80)}, v8, {sp(S_WQ)}{NT}")
    A("v_add_u32 v8, 8192, v8")
    A(f"global_load_dwordx4 {vr(84)}, v8, {sp(S_WQ)}{NT}")
    A("s_barrier")
    stamp(1)
    arow_of_lane(10)
    A(f"""v_add_u32 v10, s48, v10
      v_lshlrev_b32 v10, 1, v10
      v_and_b32 v11, 1, v0
      v_lshlrev_b32 v11, 3, v11
      v_lshl_add_u32 v11, v1, 1, v11
      v_add_u32 v11, s48, v11
      v_lshlrev_b32 v11, 1, v11
      s_lshl_b32 s45, s{S_H}, 4
      s_add_u32 s45, s45, s{S_S}
      s_lshl_b32 s45, s45, 9
      s_add_u32 s45, s45, {WS_QP}
      v_lshlrev_b32 v9, 7, v1
      v_lshl_add_u32 v9, v4, 4, v9
      v_add_u32 v9, s45, v9""")
    lds_wait(F_XN)
    stamp(2)
    A(f"""ds_read_b128 {vr(120)}, v10 offset:{L_XN}
      ds_read_b128 {vr(12)}, v10 offset:{L_XN+128}
      ds_read_b32 v10, v11 offset:{L_XN+256}
      v_mov_b32 v11, 0
      s_waitcnt vmcnt(10) lgkmcnt(0)""")
    W0ACC = 88
    stamp(4)
    mma8(16, 120, W0ACC, True, sets=(124, 4))
    A("s_waitcnt vmcnt(2)")
    stamp(5)
    mma8(48, 12, W0ACC, False, sets=(124, 4))
    A(f"""v_mov_b32 v5, {L_TAG}
      ds_read_b32 v{DD+1}, v5
      v_mov_b32 v17, 0
      v_mov_b32 v19, 0
      s_waitcnt vmcnt(0)""")
    for dd in range(8):
        t = 16 + (dd & 1) * 2
        sel = S_PLO if (dd & 1) == 0 else S_PHI
        A(f"v_perm_b32 v{t}, v{84+(dd>>1)}, v{80+(dd>>1)}, s{sel}")
        A(f"v_mfma_f32_16x16x16_bf16 {vr(W0ACC+dd*4)}, v[10:11], v[{t}:{t+1}], {vr(W0ACC+dd*4)}")
    A("s_waitcnt lgkmcnt(0)")
    publish64(W0ACC, 9, S_WS)
    lds_set(F_QP)
    stamp(3)
    A("s_branch L_DONE")

    A.label("L_W1")
    A(f"""v_lshlrev_b32 v5, 4, v0
      v_mov_b32 v20, 0
      v_mov_b32 v21, 0
      v_mov_b32 v22, 0
      v_mov_b32 v23, 0
      global_load_dwordx4 {vr(16)}, v5, {sp(S_X)}
      s_mov_b64 exec, 0xff
      global_load_dwordx4 {vr(20)}, v5, {sp(S_X)} offset:1024
      s_mov_b64 exec, -1
      s_load_dword s48, {sp(S_WS)}, {WS_EPOCH}
      s_barrier
      s_waitcnt vmcnt(0)""")
    stamp(1)
    for i in range(8):
        A(f"v_lshlrev_b32 v{24+2*i}, 16, v{16+i}\n v_and_b32 v{25+2*i}, 0xffff0000, v{16+i}")
    A("v_add_f32 v40, v24, v25")
    for i in range(26, 40): A(f"v_add_f32 v40, v40, v{i}")
    rowred("add", 40); crossrow("add", 40, 41)
    A(f"v_mul_f32 v40, {f2u(1.0/576):#x}, v40")
    A("v_sub_f32 v42, v24, v40\n v_mul_f32 v41, v42, v42")
    for i in range(25, 32):
        A(f"v_sub_f32 v42, v{i}, v40\n v_fmac_f32 v41, v42, v42")
    A("s_mov_b64 exec, 0xff")
    for i in range(32, 40):
        A(f"v_sub_f32 v42, v{i}, v40\n v_fmac_f32 v41, v42, v42")
    A("s_mov_b64 exec, -1")
    rowred("add", 41); crossrow("add", 41, 42)
    A(f"v_mul_f32 v41, {f2u(1.0/576):#x}, v41")
    rne(40, 40); rne(41, 41)
    A(f"v_add_f32 v41, {f2u(1e-5):#x}, v41")
    rne(41, 41)
    A("v_sqrt_f32 v41, v41")
    rne(41, 41)
    A("v_rcp_f32 v41, v41")
    for i in range(8):
        a, b = 24+2*i, 25+2*i
        A(f"""v_sub_f32 v{a}, v{a}, v40
          v_sub_f32 v{b}, v{b}, v40
          v_cvt_pk_bf16_f32 v{a}, v{a}, v{b}
          v_and_b32 v{b}, 0xffff0000, v{a}
          v_lshlrev_b32 v{a}, 16, v{a}
          v_mul_f32 v{a}, v{a}, v41
          v_mul_f32 v{b}, v{b}, v41
          v_cvt_pk_bf16_f32 v{16+i}, v{a}, v{b}""")
    A(f"""ds_write_b128 v5, {vr(16)} offset:{L_XN}
      s_mov_b64 exec, 0xff
      ds_write_b128 v5, {vr(20)} offset:{L_XN+1024}
      s_mov_b64 exec, -1
      s_waitcnt lgkmcnt(0)
      s_add_u32 s48, s48, {PHI}
      v_mov_b32 v14, s48
      v_mov_b32 v6, {L_TAG}
      ds_write_b32 v6, v14""")
    lds_set(F_XN)
    stamp(2)
    A(f"""s_lshl_b32 s45, s{S_H}, 13
      s_add_u32 s45, s45, {WS_QP}
      v_lshlrev_b32 v7, 4, v0
      v_add_u32 v7, s45, v7
      v_add_u32 v8, 4096, v7""")
    lds_wait(F_QP)
    A.label("L_QSW")
    for r in range(4):
        for hh in range(2):
            off = r*2048 + hh*1024
            A(f"global_load_dwordx4 {vr(16+(r*2+hh)*4)}, v{7 if off < 4096 else 8}, {sp(S_WS)} offset:{off & 4095} sc1")
    A("s_waitcnt vmcnt(0)")
    tagcheck(14, [16+4*i+1 for i in range(8)] + [16+4*i+3 for i in range(8)], 48, 49, 50, "L_QSW")
    for hh in range(2):
        for e in (0, 2):
            d = 52+hh*2+e//2
            A(f"v_add_f32 v{d}, v{16+hh*4+e}, v{16+(2+hh)*4+e}")
            A(f"v_add_f32 v{d}, v{d}, v{16+(4+hh)*4+e}")
            A(f"v_add_f32 v{d}, v{d}, v{16+(6+hh)*4+e}")
    A("v_cvt_pk_bf16_f32 v52, v52, v53\n v_cvt_pk_bf16_f32 v54, v54, v55")
    A(f"""v_lshrrev_b32 v9, 5, v0
      v_lshlrev_b32 v9, 7, v9
      v_lshl_add_u32 v9, v4, 4, v9
      v_bfe_u32 v10, v0, 3, 2
      v_lshl_add_u32 v9, v10, 2, v9
      ds_write_b32 v9, v52 offset:{L_Q}
      ds_write_b32 v9, v54 offset:{L_Q+256}""")
    lds_set(F_Q)
    stamp(3)
    A(f"""s_lshl_b32 s45, s{S_RBO}, 13
      s_add_u32 s45, s45, {WS_OP}
      v_lshlrev_b32 v7, 3, v0
      v_add_u32 v7, s45, v7
      v_add_u32 v8, 4096, v7
      s_lshr_b32 s45, s{S_RBO}, 1
      s_lshl_b32 s45, s45, 8
      s_add_u32 s45, s45, {WS_OS}
      v_lshlrev_b32 v9, 4, v2
      v_add_u32 v9, s45, v9""")
    lds_wait(F_OP, vtmp=10, vaddr=11)
    A.label("L_OSW")
    A(f"global_load_dwordx4 {vr(48)}, v9, {sp(S_WS)} sc1")
    for s in range(16):
        off = s*512
        A(f"global_load_dwordx2 v[{16+2*s}:{17+2*s}], v{7 if off < 4096 else 8}, {sp(S_WS)} offset:{off & 4095} sc1")
    A("s_waitcnt vmcnt(0)")
    tagcheck(14, [49, 51] + [17+2*s for s in range(16)], 52, 53, 54, "L_OSW")
    stamp(4)
    A("v_mov_b32 v52, v48")
    rowred("max", 52)
    A("v_sub_f32 v52, v48, v52\n v_exp_f32 v52, v52\n v_mul_f32 v53, v52, v50")
    rowred("add", 53)
    A("v_rcp_f32 v53, v53\n v_mul_f32 v52, v52, v53")
    for s in range(16):
        A(f"v_readlane_b32 s{48+s}, v52, {s}")
    A("v_mul_f32 v55, s48, v16")
    for s in range(1, 16):
        A(f"v_fmac_f32 v55, s{48+s}, v{16+2*s}")
    A(f"""v_cvt_pk_bf16_f32 v55, v55, v55
      v_lshrrev_b32 v9, 3, v0
      v_lshl_add_u32 v9, v4, 3, v9
      v_lshlrev_b32 v9, 1, v9
      ds_write_b16 v9, v55 offset:{L_O}""")
    lds_set(F_O)
    stamp(5)
    A(f"""s_cmp_ge_u32 s{S_KK}, 27
      s_cbranch_scc1 L_DONE
      s_mul_i32 s45, s{S_CB}, 3072
      s_add_u32 s45, s45, {WS_HP}
      v_lshlrev_b32 v7, 4, v0
      v_add_u32 v7, s45, v7""")
    lds_wait(F_GP, vtmp=10, vaddr=11)
    A.label("L_HSW")
    for r in range(3):
        A(f"global_load_dwordx4 {vr(16+4*r)}, v7, {sp(S_WS)} offset:{r*1024} sc1")
    A("s_waitcnt vmcnt(0)")
    tagcheck(14, [17, 19, 21, 23, 25, 27], 52, 53, 54, "L_HSW")
    stamp(6)
    A("""v_add_f32 v16, v16, v20
      v_add_f32 v18, v18, v22
      v_add_f32 v16, v16, v24
      v_add_f32 v18, v18, v26""")
    rne(16, 16); rne(18, 18)
    silu(16, 20)
    rne(16, 16)
    A(f"""v_mul_f32 v16, v16, v18
      v_cvt_pk_bf16_f32 v16, v16, v16
      v_lshlrev_b32 v9, 1, v0
      ds_write_b16 v9, v16 offset:{L_H}""")
    lds_set(F_H)
    stamp(7)
    A("s_branch L_DONE")

    A.label("L_GV")
    A(f"""s_sub_u32 s50, s{S_W}, 2
      s_cmp_ge_u32 s{S_KK}, 27
      s_cbranch_scc1 L_GVB""")
    row_of_lane(5)
    A(f"""s_lshr_b32 s44, s50, 1
      s_mul_i32 s45, s{S_RT}, 3
      s_add_u32 s45, s45, s44
      s_lshl_b32 s51, s45, 6
      v_add_u32 v5, s51, v5
      s_mov_b32 s44, 9216
      v_mul_lo_u32 v9, v5, s44
      v_lshl_add_u32 v9, v4, 4, v9
      s_lshl_b32 s44, s{S_CB}, 7
      v_add_u32 v9, s44, v9
      s_bitcmp1_b32 s50, 0
      s_cselect_b32 s48, s{S_WU}, s{S_WG}
      s_cselect_b32 s49, s{S_WU+1}, s{S_WG+1}""")
    arow_of_lane(10)
    A("v_add_u32 v10, s51, v10\n v_lshlrev_b32 v10, 1, v10")
    lds_wait(C_VISS, 8, vtmp=7, vaddr=8)
    stamp(2)
    for i in range(8):
        A(f"global_load_dwordx4 {vr(TILE+4*i)}, v9, s[48:49]{NT}")
        if i < 7: A("v_add_u32 v9, 9216, v9")
    lds_wait(F_XN, vtmp=7, vaddr=8)
    A(f"ds_read_b128 {vr(AF)}, v10 offset:{L_XN}\n s_waitcnt vmcnt(0) lgkmcnt(0)")
    stamp(3)
    mma8(TILE, AF, ACC, True)
    for dd in range(8):
        A(f"v_add_f32_dpp v{TILE+dd}, v{ACC+dd*4+1}, v{ACC+dd*4} row_ror:8 row_mask:0xf bank_mask:0xf")
    A(f"""s_lshl_b32 s44, s50, 8
      v_lshlrev_b32 v6, 5, v4
      v_add_u32 v6, s44, v6
      s_mov_b64 exec, 0xff
      ds_write_b128 v6, {vr(TILE)} offset:{L_GU}
      ds_write_b128 v6, {vr(TILE+4)} offset:{L_GU+16}
      s_mov_b64 exec, -1""")
    lds_count(C_GU)
    A(f"""s_cmp_lg_u32 s44, 5
      s_cbranch_scc1 L_DONE
      v_lshlrev_b32 v6, 2, v0""")
    for v in range(6):
        A(f"ds_read_b32 v{16+v}, v6 offset:{L_GU+v*256}")
    A(f"""v_mov_b32 v7, {L_TAG}
      ds_read_b32 v25, v7
      s_mul_i32 s44, s{S_CB}, 3
      s_add_u32 s44, s44, s{S_RT}
      s_lshl_b32 s44, s44, 10
      s_add_u32 s44, s44, {WS_HP}
      v_lshlrev_b32 v6, 4, v0
      v_add_u32 v6, s44, v6
      s_waitcnt lgkmcnt(0)
      v_add_f32 v24, v16, v18
      v_add_f32 v26, v17, v19
      v_add_f32 v24, v24, v20
      v_add_f32 v26, v26, v21
      v_mov_b32 v27, v25
      global_store_dwordx4 v6, {vr(24)}, {sp(S_WS)} sc1""")
    lds_set(F_GP)
    stamp(4)
    A("s_branch L_DONE")
    A.label("L_GVB")
    lds_wait(C_VISS, 8, vtmp=7, vaddr=8)
    stamp(2)
    tile1152(None, 50, S_WO, WS_PO, S_RBO, F_O, L_O)
    A("s_mov_b32 s55, 0\n s_branch L_TASK2")

    A.label("L_ATT")
    A(f"""s_sub_u32 s50, s{S_W}, 8
      s_lshl_b32 s44, s{S_H}, 24
      s_lshl_b32 s45, s{S_S}, 8
      s_lshl_b32 s46, s50, 5
      s_add_u32 s45, s45, s46
      s_add_u32 s45, s45, 61440
      s_lshl_b32 s45, s45, 8
      s_add_u32 s44, s44, s45
      s_add_u32 s56, s{S_K}, s44
      s_addc_u32 s57, s{S_K+1}, 0
      s_add_u32 s58, s{S_V}, s44
      s_addc_u32 s59, s{S_V+1}, 0
      v_lshlrev_b32 v5, 8, v2
      v_lshl_add_u32 v5, v1, 4, v5
      v_add_u32 v6, 4096, v5
      v_lshlrev_b32 v7, 10, v1
      v_lshl_add_u32 v7, v2, 4, v7
      v_add_u32 v8, 4096, v7""")
    for t in range(2):
        for i in range(4):
            throttle(t*4+i)
            A(f"global_load_dwordx4 {vr(16+(t*4+i)*4)}, v{5+t}, s[56:57] offset:{i*64}{NT}")
    for i in range(8):
        throttle(8+i)
        A(f"global_load_dwordx4 {vr(48+i*4)}, v{7+(i>>2)}, s[58:59] offset:{(i&3)*256}{NT}")
    lds_count(C_VISS)
    stamp(2)
    lds_wait(F_Q)
    stamp(3)
    A(f"""v_and_b32 v5, 1, v0
      v_lshlrev_b32 v5, 8, v5
      v_lshl_add_u32 v5, v1, 4, v5""")
    for i in range(4):
        A(f"ds_read_b128 {vr(80+4*i)}, v5 offset:{L_Q+64*i}")
    A("s_waitcnt vmcnt(8) lgkmcnt(0)")
    for i in range(4):
        for t in range(2):
            c = "0" if i == 0 else vr(112+4*t)
            A(f"v_mfma_f32_16x16x32_bf16 {vr(112+4*t)}, {vr(16+(t*4+i)*4)}, {vr(80+4*i)}, {c}")
    A("""v_max3_f32 v9, v112, v113, v114
      v_max3_f32 v9, v9, v115, v116
      v_max3_f32 v9, v9, v117, v118
      v_max_f32 v9, v9, v119""")
    crossrow("max", 9, 10)
    A(f"s_mov_b32 s44, {f2u(CSC):#x}\n v_mul_f32 v9, s44, v9")
    for r in range(8):
        A(f"v_fma_f32 v{112+r}, v{112+r}, s44, -v9\n v_exp_f32 v{112+r}, v{112+r}")
    A("v_add_f32 v10, v112, v113")
    for r in range(2, 8): A(f"v_add_f32 v10, v10, v{112+r}")
    for p in range(4):
        A(f"v_cvt_pk_bf16_f32 v{120+p}, v{112+2*p}, v{113+2*p}")
    crossrow("add", 10, 11)
    A("v_mov_b32 v12, v9\n v_mov_b32 v13, v10")
    stamp(4)
    A(f"""s_mov_b32 s55, 0
      s_cmp_ge_u32 s{S_KK}, 27
      s_cbranch_scc1 L_AT2B
      s_cmp_gt_u32 s50, 3
      s_cbranch_scc1 L_AT2N
      s_mov_b32 s51, s{S_LINE}
      s_cmp_eq_u32 s50, 3
      s_cbranch_scc1 L_AT2WO
      s_mul_i32 s51, s{S_RT}, 3
      s_add_u32 s51, s51, s50""")
    tile1152(None, 51, S_WD, WS_PD, S_CB, F_H, L_H)
    A("s_mov_b32 s55, 1\n s_waitcnt vmcnt(8)\n s_branch L_PV")
    A.label("L_AT2B")
    A(f"""s_cmp_gt_u32 s50, 2
      s_cbranch_scc1 L_AT2N
      s_add_u32 s51, s50, 6""")
    A.label("L_AT2WO")
    tile1152(None, 51, S_WO, WS_PO, S_RBO, F_O, L_O)
    A("s_mov_b32 s55, 1\n s_waitcnt vmcnt(8)\n s_branch L_PV")
    A.label("L_AT2N")
    A("s_waitcnt vmcnt(0)")
    A.label("L_PV")
    stamp(5)
    mma8(48, 120, ACC, True)
    A(f"""s_lshl_b32 s44, s50, 10
      s_add_u32 s44, s44, {L_ATT}
      v_bfe_u32 v5, v0, 1, 2
      v_lshlrev_b32 v5, 4, v5
      v_lshl_add_u32 v5, v3, 3, v5
      v_and_b32 v6, 1, v0
      v_lshl_add_u32 v5, v6, 2, v5
      v_add_u32 v5, s44, v5
      s_lshl_b32 s44, s50, 3
      v_lshlrev_b32 v6, 6, v6
      v_add_u32 v6, s44, v6
      s_mov_b64 exec, 0xffff""")
    for dd in range(8):
        A(f"ds_write2_b32 v5, v{ACC+dd*4}, v{ACC+dd*4+1} offset0:{dd*16} offset1:{128+dd*16}")
    A(f"""s_mov_b64 exec, 3
      ds_write_b64 v6, v[12:13] offset:{L_ST}
      s_mov_b64 exec, -1""")
    lds_count(C_ATT)
    A(f"""s_cmp_lg_u32 s44, 7
      s_cbranch_scc1 L_ATC
      v_lshlrev_b32 v5, 4, v0
      v_lshrrev_b32 v6, 5, v0
      v_lshlrev_b32 v7, 6, v6""")
    for w in range(8):
        A(f"ds_read_b128 {vr(48+4*w)}, v5 offset:{L_ATT+w*1024}")
    for i in range(4):
        A(f"ds_read_b128 {vr(80+4*i)}, v7 offset:{L_ST+16*i}")
    A(f"""v_mov_b32 v8, {L_TAG}
      ds_read_b32 v101, v8
      s_lshl_b32 s44, s{S_H}, 2
      s_lshl_b32 s44, s44, 13
      s_lshl_b32 s45, s{S_S}, 9
      s_add_u32 s44, s44, s45
      s_add_u32 s44, s44, {WS_OP}
      v_lshlrev_b32 v9, 14, v6
      v_and_b32 v10, 31, v0
      v_lshl_add_u32 v9, v10, 4, v9
      v_add_u32 v9, s44, v9
      v_add_u32 v10, 8192, v9
      s_lshl_b32 s44, s{S_H}, 9
      s_lshl_b32 s45, s{S_S}, 4
      s_add_u32 s44, s44, s45
      s_add_u32 s44, s44, {WS_OS}
      v_lshlrev_b32 v11, 8, v6
      v_add_u32 v11, s44, v11
      s_waitcnt lgkmcnt(0)
      v_max3_f32 v96, v80, v82, v84
      v_max3_f32 v96, v96, v86, v88
      v_max3_f32 v96, v96, v90, v92
      v_max_f32 v96, v96, v94""")
    for w in range(8):
        A(f"v_sub_f32 v{80+2*w}, v{80+2*w}, v96\n v_exp_f32 v{80+2*w}, v{80+2*w}")
    A("v_mul_f32 v98, v80, v81")
    for w in range(1, 8): A(f"v_fmac_f32 v98, v{80+2*w}, v{81+2*w}")
    for e in range(4):
        A(f"v_mul_f32 v{100+2*e}, v80, v{48+e}")
    for w in range(1, 8):
        for e in range(4):
            A(f"v_fmac_f32 v{100+2*e}, v{80+2*w}, v{48+4*w+e}")
    A(f"""v_mov_b32 v103, v101
      v_mov_b32 v105, v101
      v_mov_b32 v107, v101
      v_mov_b32 v97, v101
      v_mov_b32 v99, v101
      global_store_dwordx4 v9, {vr(100)}, {sp(S_WS)} sc1
      global_store_dwordx4 v10, {vr(104)}, {sp(S_WS)} sc1
      s_mov_b32 s46, 1
      s_mov_b32 s47, 1
      s_mov_b64 exec, s[46:47]
      global_store_dwordx4 v11, {vr(96)}, {sp(S_WS)} sc1
      s_mov_b64 exec, -1""")
    lds_set(F_OP)
    A.label("L_ATC")
    stamp(6)
    A("s_cmp_eq_u32 s55, 0\n s_cbranch_scc1 L_FINCHK")

    A.label("L_TASK2")
    arow_of_lane(5)
    A(f"""v_lshlrev_b32 v10, 1, v5
      v_add_u32 v10, s53, v10
      v_lshlrev_b32 v9, 7, v1
      v_lshl_add_u32 v9, v4, 4, v9
      v_add_u32 v9, s54, v9
      v_mov_b32 v6, s52""")
    lw = L("W"); ld = L("WD")
    A.label(lw)
    A(f"""ds_read_b32 v5, v6
      s_waitcnt lgkmcnt(0)
      v_readfirstlane_b32 s44, v5
      s_cmp_lg_u32 s44, 0
      s_cbranch_scc1 {ld}
      s_sleep 1
      s_sub_u32 s79, s79, 1
      s_cbranch_scc0 {lw}
      s_branch L_DONE""")
    A.label(ld)
    stamp(7)
    A(f"""ds_read_b128 {vr(AF)}, v10
      v_mov_b32 v5, {L_TAG}
      ds_read_b32 v{DD+1}, v5
      s_waitcnt vmcnt(0) lgkmcnt(0)""")
    mma8(TILE, AF, ACC, True)
    publish64(ACC, 9, S_WS)
    stamp(8)
    A("s_cmp_eq_u32 s55, 0\n s_cbranch_scc1 L_DONE")

    A.label("L_FINCHK")
    A(f"""s_cmp_lt_u32 s2, 216
      s_cbranch_scc1 L_DONE""")
    A(f"""s_sub_u32 s60, s{S_KK}, 27
      s_lshl_b32 s60, s60, 3
      s_add_u32 s60, s60, s{S_XC}
      s_cmp_ge_u32 s60, 36
      s_cbranch_scc1 L_DONE
      s_lshl_b32 s61, s60, 7
      v_lshrrev_b32 v5, 3, v0
      s_lshl_b32 s44, s50, 3
      v_add_u32 v6, s44, v5
      v_mul_u32_u24 v6, 4608, v6
      v_lshl_add_u32 v6, v4, 4, v6
      v_add_u32 v6, s61, v6
      v_add_u32 v6, {WS_PO}, v6
      s_mul_i32 s44, s50, 9
      v_add_u32 v7, s44, v5
      v_mul_u32_u24 v7, 4608, v7
      v_lshl_add_u32 v7, v4, 4, v7
      v_add_u32 v7, s61, v7
      v_add_u32 v7, {WS_PD}, v7
      s_add_u32 s44, s44, 8
      s_mul_i32 s44, s44, 4608
      s_add_u32 s44, s44, s61
      s_add_u32 s44, s44, {WS_PD}
      v_lshlrev_b32 v8, 4, v4
      v_add_u32 v8, s44, v8
      v_mov_b32 v9, {L_TAG}
      ds_read_b32 v14, v9
      s_lshr_b32 s62, s60, 2
      s_lshl_b32 s62, s62, 7
      s_and_b32 s44, s60, 3
      s_lshl_b32 s44, s44, 2
      s_add_u32 s62, s62, s44
      v_lshlrev_b32 v10, 4, v4
      v_add_u32 v10, s62, v10
      global_load_dword v15, v10, {sp(S_X)}
      s_waitcnt lgkmcnt(0)
      v_mov_b32 v24, 0
      v_mov_b32 v25, v14
      v_mov_b32 v26, 0
      v_mov_b32 v27, v14""")
    A.label("L_FSW")
    A(f"""global_load_dwordx4 {vr(16)}, v6, {sp(S_WS)} sc1
      global_load_dwordx4 {vr(20)}, v7, {sp(S_WS)} sc1
      s_mov_b64 exec, 0xff
      global_load_dwordx4 {vr(24)}, v8, {sp(S_WS)} sc1
      s_mov_b64 exec, -1
      s_waitcnt vmcnt(0)""")
    tagcheck(14, [17, 19, 21, 23, 25, 27], 28, 29, 30, "L_FSW")
    stamp(9)
    A(f"""v_add_f32 v20, v20, v24
      v_add_f32 v22, v22, v26
      v_lshlrev_b32 v9, 4, v4
      ds_add_f32 v9, v16 offset:{L_FACC}
      ds_add_f32 v9, v18 offset:{L_FACC+4}
      ds_add_f32 v9, v20 offset:{L_FACC+8}
      ds_add_f32 v9, v22 offset:{L_FACC+12}""")
    lds_count(C_FIN)
    A(f"""s_cmp_lg_u32 s44, 7
      s_cbranch_scc1 L_DONE
      ds_read_b128 {vr(16)}, v9 offset:{L_FACC}
      s_waitcnt lgkmcnt(0)""")
    for e in range(2):
        rne(16+e, 16+e); rne(18+e, 18+e)
        silu(18+e, 20)
        rne(18+e, 18+e)
        A(f"v_mul_f32 v{16+e}, v{16+e}, v{18+e}")
        rne(16+e, 16+e)
    A(f"""v_lshlrev_b32 v20, 16, v15
      v_and_b32 v21, 0xffff0000, v15
      v_add_f32 v16, v16, v20
      v_add_f32 v17, v17, v21
      v_cvt_pk_bf16_f32 v16, v16, v17
      s_mov_b64 exec, 0xff
      global_store_dword v10, v16, {sp(S_OUT)}
      s_mov_b64 exec, -1
      s_cmp_lg_u32 s60, 0
      s_cbranch_scc1 L_DONE
      v_mov_b32 v5, {WS_EPOCH}
      s_mov_b64 exec, 1
      global_store_dword v5, v14, {sp(S_WS)}
      s_mov_b64 exec, -1""")
    A.label("L_DONE")
    if stamps:
        A(f"""s_memrealtime s[100:101]
          s_lshl_b32 s44, s2, 4
          s_add_u32 s44, s44, s{S_W}
          s_lshl_b32 s44, s44, 7
          s_add_u32 s44, s44, {STAMP}
          s_add_u32 s44, s{S_WS}, s44
          s_addc_u32 s45, s{S_WS+1}, 0
          s_waitcnt lgkmcnt(0)
          v_mov_b32 v5, 0""")
        for i in range(11):
            A(f"v_mov_b32 v6, s{80+2*i}\n v_mov_b32 v7, s{81+2*i}\n global_store_dwordx2 v5, v[6:7], s[44:45] offset:{i*8}")
    A.label("L_END")
    A("s_endpgm")
    body, npad = A.finish()
    name = NAME + "_kernel"
    s = HDR + f"; @launch grid=(256,1,1) block=(1024,1,1) lds={LDS_BYTES}\n"
    s += '.amdgcn_target "amdgcn-amd-amdhsa--gfx950"\n.text\n'
    s += f".globl {name}\n.p2align 8\n.type {name},@function\n{name}:\n" + body
    s += '.section .rodata,"a"\n.p2align 6\n'
    s += f".amdhsa_kernel {name}\n  .amdhsa_next_free_vgpr 128\n  .amdhsa_next_free_sgpr 102\n  .amdhsa_accum_offset 128\n"
    s += "  .amdhsa_group_segment_fixed_size 0\n  .amdhsa_kernarg_size 96\n  .amdhsa_user_sgpr_count 2\n  .amdhsa_user_sgpr_kernarg_segment_ptr 1\n  .amdhsa_system_sgpr_workgroup_id_x 1\n.end_amdhsa_kernel\n"
    return s, npad

if __name__ == "__main__":
    for win in (None, 2, 3, 4):
        tag = "k2" + ("" if win is None else f"w{win}")
        s, n = gen(stamps=False, opts=dict(win=win)); open(tag + ".s", "w").write(s)
        s, n = gen(stamps=True, opts=dict(win=win)); open(tag + "s.s", "w").write(s)
```

```python
import sys, struct
from hz import Asm
from asmlib import HDR, NAME

PHI = 0x9E3779B9
WS_EPOCH = 0
WS_QP = 0x10000
WS_OS = 0x38000
WS_OP = 0x40000
WS_HP = 0xC0000
WS_PD = 0x100000
WS_PO = 0x160000
STAMP = 0x30000000
F_XN, F_Q, C_ATT, C_GU, C_VISS, F_O, F_H, C_FIN, L_TAG, F_QP, F_OP, F_GP = 0, 4, 8, 12, 16, 20, 24, 28, 32, 36, 40, 44
L_FACC = 64
L_XN = 0x100; L_Q = 0x600; L_O = 0x800; L_H = 0x880; L_GU = 0x900; L_ATT = 0x1000; L_ST = 0x3000
LDS_BYTES = 0x3100
CSC = 0.08838834764831845 * 1.4426950408889634
LOG2E = 1.4426950408889634
def f2u(x): return struct.unpack('<I', struct.pack('<f', x))[0]

S_X, S_K, S_V, S_WQ, S_WO, S_BX, S_WG, S_WU, S_WD, S_OUT, S_DBG, S_WS = 8, 10, 12, 14, 16, 18, 20, 22, 24, 26, 28, 30
S_W, S_H, S_S, S_XC, S_KK, S_PLO, S_PHI = 32, 33, 34, 35, 36, 38, 39
S_CB, S_RT, S_RBO, S_LINE = 40, 41, 42, 43
TILE = 16; ACC = 80; TMP = 112; AF = 120; DD = 124

def gen(stamps=False, nt=True, opts=None):
    opts = opts or {}
    NT = " nt" if nt else ""
    WIN = opts.get("win", None)
    def throttle(n_issued_before):
        if WIN is not None and n_issued_before >= WIN:
            A(f"s_waitcnt vmcnt({WIN-1})")
    A = Asm()
    sp = lambda n: f"s[{n}:{n+1}]"
    vr = lambda n, k=4: f"v[{n}:{n+k-1}]"
    uid = [0]
    def L(p="L"):
        uid[0] += 1; return f"{p}_{uid[0]}"
    def stamp(i):
        if stamps: A(f"s_memrealtime s[{80+2*i}:{81+2*i}]")
    def lds_wait(addr, val=None, vtmp=5, vaddr=6):
        l = L("W"); d = L("WD")
        A(f"v_mov_b32 v{vaddr}, {addr}")
        A.label(l)
        A(f"ds_read_b32 v{vtmp}, v{vaddr}")
        A("s_waitcnt lgkmcnt(0)")
        A(f"v_readfirstlane_b32 s44, v{vtmp}")
        A("s_cmp_lg_u32 s44, 0" if val is None else f"s_cmp_eq_u32 s44, {val}")
        A(f"s_cbranch_scc1 {d}")
        A("s_sleep 1")
        A("s_sub_u32 s79, s79, 1")
        A(f"s_cbranch_scc0 {l}")
        A("s_branch L_DONE")
        A.label(d)
    def lds_set(addr, vt=5, va=6):
        A(f"s_waitcnt lgkmcnt(0)\n v_mov_b32 v{va}, {addr}\n v_mov_b32 v{vt}, 1\n ds_write_b32 v{va}, v{vt}")
    def lds_count(addr, vt=5, va=6):
        A(f"""s_waitcnt lgkmcnt(0)
          v_mov_b32 v{va}, {addr}
          v_mov_b32 v{vt}, 1
          s_mov_b64 exec, 1
          ds_add_rtn_u32 v{vt}, v{va}, v{vt}
          s_waitcnt lgkmcnt(0)
          v_readfirstlane_b32 s44, v{vt}
          s_mov_b64 exec, -1""")
    def mma8(tile, af, acc, first, sets=(TMP, TMP+4)):
        def P(dd):
            t = sets[dd & 1]
            sel = S_PLO if (dd & 1) == 0 else S_PHI
            for p in range(4):
                A(f"v_perm_b32 v{t+p}, v{tile+(2*p+1)*4+(dd>>1)}, v{tile+(2*p)*4+(dd>>1)}, s{sel}")
        def M(dd):
            t = sets[dd & 1]
            c = "0" if first else vr(acc+dd*4)
            A(f"v_mfma_f32_16x16x32_bf16 {vr(acc+dd*4)}, {vr(af)}, {vr(t)}, {c}")
        P(0); P(1)
        for dd in range(8):
            M(dd)
            if dd+2 < 8: P(dd+2)
    def publish64(acc, voff, base_s):
        for k in range(4):
            A(f"v_add_f32_dpp v{DD}, v{acc+(2*k)*4+1}, v{acc+(2*k)*4} row_ror:8 row_mask:{1<<k:#x} bank_mask:0xf")
            A(f"v_add_f32_dpp v{DD+2}, v{acc+(2*k+1)*4+1}, v{acc+(2*k+1)*4} row_ror:8 row_mask:{1<<k:#x} bank_mask:0xf")
        A(f"v_mov_b32 v{DD+3}, v{DD+1}")
        A("s_mov_b32 s46, 0x00ff00ff\n s_mov_b32 s47, 0x00ff00ff\n s_mov_b64 exec, s[46:47]")
        A(f"global_store_dwordx4 v{voff}, {vr(DD)}, {sp(base_s)} sc1")
        A("s_mov_b64 exec, -1")
    def rowred(op, v):
        for r in (8, 4, 2, 1):
            A(f"v_{op}_f32_dpp v{v}, v{v}, v{v} row_ror:{r} row_mask:0xf bank_mask:0xf")
    def crossrow(op, v, t):
        A(f"v_mov_b32 v{t}, v{v}\n v_permlane16_swap_b32 v{v}, v{t}\n v_{op}_f32 v{v}, v{v}, v{t}")
        A(f"v_mov_b32 v{t}, v{v}\n v_permlane32_swap_b32 v{v}, v{t}\n v_{op}_f32 v{v}, v{v}, v{t}")
    def rne(dst, src):
        A(f"v_cvt_pk_bf16_f32 v{dst}, v{src}, v{src}\n v_lshlrev_b32 v{dst}, 16, v{dst}")
    def silu(v, t):
        A(f"""v_mul_f32 v{t}, {f2u(-LOG2E):#x}, v{v}
          v_exp_f32 v{t}, v{t}
          v_add_f32 v{t}, 1.0, v{t}
          v_rcp_f32 v{t}, v{t}
          v_mul_f32 v{v}, v{v}, v{t}""")
    def tagcheck(tagv, regs, acc, t1, t2, retry):
        first = True
        for i in range(0, len(regs), 2):
            A(f"v_xor_b32 v{t1}, v{tagv}, v{regs[i]}")
            if i+1 < len(regs):
                A(f"v_xor_b32 v{t2}, v{tagv}, v{regs[i+1]}")
                A(f"v_or_b32 v{acc}, v{t1}, v{t2}" if first else f"v_or3_b32 v{acc}, v{acc}, v{t1}, v{t2}")
            else:
                A(f"v_mov_b32 v{acc}, v{t1}" if first else f"v_or_b32 v{acc}, v{acc}, v{t1}")
            first = False
        ok = L("OK")
        A(f"v_cmp_ne_u32 vcc, 0, v{acc}")
        A(f"s_cbranch_vccz {ok}")
        A("s_sub_u32 s79, s79, 1")
        A(f"s_cbranch_scc0 {retry}")
        A("s_branch L_DONE")
        A.label(ok)
    def row_of_lane(dst):
        A(f"v_lshlrev_b32 v{dst}, 5, v3\n v_lshl_add_u32 v{dst}, v1, 3, v{dst}")
    def arow_of_lane(dst):
        A(f"v_and_b32 v{dst}, 1, v0\n v_lshlrev_b32 v{dst}, 5, v{dst}\n v_lshl_add_u32 v{dst}, v1, 3, v{dst}")
    def tile1152(rowbase_s, line_s, wbase, outbase, rb_s, flag, vec):
        row_of_lane(5)
        A(f"""s_lshl_b32 s44, s{rb_s}, 6
          v_add_u32 v6, s44, v5
          v_mul_u32_u24 v6, 1152, v6
          v_lshl_add_u32 v6, v4, 4, v6
          s_lshl_b32 s44, s{line_s}, 7
          v_add_u32 v6, s44, v6
          v_add_u32 v7, 4608, v6""")
        for i in range(8):
            A(f"global_load_dwordx4 {vr(TILE+4*i)}, v{6+(i>>2)}, {sp(wbase)} offset:{(i&3)*1152}{NT}")
        A(f"""s_mul_i32 s54, s{rb_s}, 4608
          s_lshl_b32 s44, s{line_s}, 9
          s_add_u32 s54, s54, s44
          s_add_u32 s54, s54, {outbase}
          s_mov_b32 s52, {flag}
          s_mov_b32 s53, {vec}""")

    stamp(0)
    if opts.get("dbgtime"): A("s_memrealtime s[96:97]")
    A(f"""s_cmp_ge_u32 s2, 256
      s_cbranch_scc1 L_END
      s_load_dwordx16 s[8:23], s[0:1], 0
      s_load_dwordx8 s[24:31], s[0:1], 64
      v_lshrrev_b32 v1, 6, v0
      v_and_b32 v0, 63, v0
      v_readfirstlane_b32 s{S_W}, v1
      s_and_b32 s{S_XC}, s2, 7
      s_lshr_b32 s{S_KK}, s2, 3
      s_lshr_b32 s{S_H}, s2, 7
      s_lshl_b32 s{S_H}, s{S_H}, 3
      s_add_u32 s{S_H}, s{S_H}, s{S_XC}
      s_and_b32 s{S_S}, s{S_KK}, 15
      s_mov_b32 s79, 100000
      s_mov_b32 s{S_PLO}, 0x05040100
      s_mov_b32 s{S_PHI}, 0x07060302
      v_mov_b32 v5, 0
      v_lshlrev_b32 v6, 2, v0
      ds_write_b32 v6, v5
      v_lshrrev_b32 v1, 4, v0
      v_and_b32 v2, 15, v0
      v_bfe_u32 v3, v0, 3, 1
      v_and_b32 v4, 7, v0
      s_mul_i32 s44, s{S_KK}, 11
      s_lshr_b32 s44, s44, 5
      s_mul_i32 s45, s44, 3
      s_sub_u32 s{S_RT}, s{S_KK}, s45
      s_mul_i32 s{S_CB}, s{S_XC}, 9
      s_add_u32 s{S_CB}, s{S_CB}, s44
      s_mul_i32 s44, s{S_KK}, 57
      s_lshr_b32 s44, s44, 9
      s_mul_i32 s45, s44, 9
      s_sub_u32 s{S_LINE}, s{S_KK}, s45
      s_add_u32 s44, s44, 5
      s_sub_u32 s45, s{S_KK}, 27
      s_cmp_lt_u32 s{S_KK}, 27
      s_cselect_b32 s44, s44, s45
      s_lshl_b32 s45, s{S_XC}, 2
      s_add_u32 s45, s45, s44
      s_add_u32 s46, s45, 28
      s_cmp_lt_u32 s44, 4
      s_cselect_b32 s{S_RBO}, s45, s46
      s_waitcnt lgkmcnt(0)
      s_cmp_lt_u32 s{S_W}, 2
      s_cbranch_scc1 L_W01
      s_barrier""")
    stamp(1)
    A(f"""s_cmp_ge_u32 s{S_W}, 8
      s_cbranch_scc1 L_ATT
      s_branch L_GV""")
    A.label("L_W01")
    A(f"""s_setprio 3
      s_cmp_eq_u32 s{S_W}, 1
      s_cbranch_scc1 L_W1""")

    A(f"""s_lshr_b32 s44, s{S_S}, 2
      s_mul_i32 s48, s44, 144
      s_lshl_b32 s45, s48, 13
      s_lshl_b32 s46, s{S_H}, 9
      s_add_u32 s45, s45, s46
      s_and_b32 s46, s{S_S}, 3
      s_lshl_b32 s46, s46, 7
      s_add_u32 s45, s45, s46""")
    row_of_lane(5)
    A(f"""v_lshlrev_b32 v6, 13, v5
      v_lshl_add_u32 v6, v4, 4, v6
      v_add_u32 v6, s45, v6""")
    for i in range(8):
        A(f"global_load_dwordx4 {vr(16+4*i)}, v6, {sp(S_WQ)}{NT}")
        A(f"v_add_u32 v6, {8192 if i < 7 else 57*8192}, v6")
    for i in range(8):
        A(f"global_load_dwordx4 {vr(48+4*i)}, v6, {sp(S_WQ)}{NT}")
        if i < 7: A("v_add_u32 v6, 8192, v6")
    A(f"""v_lshlrev_b32 v7, 3, v3
      v_lshl_add_u32 v7, v1, 1, v7
      v_add_u32 v8, 128, v7
      v_lshlrev_b32 v8, 13, v8
      v_lshl_add_u32 v8, v4, 4, v8
      v_add_u32 v8, s45, v8""")
    A(f"global_load_dwordx4 {vr(80)}, v8, {sp(S_WQ)}{NT}")
    A("v_add_u32 v8, 8192, v8")
    A(f"global_load_dwordx4 {vr(84)}, v8, {sp(S_WQ)}{NT}")
    A("s_barrier")
    stamp(1)
    arow_of_lane(10)
    A(f"""v_add_u32 v10, s48, v10
      v_lshlrev_b32 v10, 1, v10
      v_and_b32 v11, 1, v0
      v_lshlrev_b32 v11, 3, v11
      v_lshl_add_u32 v11, v1, 1, v11
      v_add_u32 v11, s48, v11
      v_lshlrev_b32 v11, 1, v11
      s_lshl_b32 s45, s{S_H}, 4
      s_add_u32 s45, s45, s{S_S}
      s_lshl_b32 s45, s45, 9
      s_add_u32 s45, s45, {WS_QP}
      v_lshlrev_b32 v9, 7, v1
      v_lshl_add_u32 v9, v4, 4, v9
      v_add_u32 v9, s45, v9""")
    lds_wait(F_XN)
    stamp(2)
    A(f"""ds_read_b128 {vr(120)}, v10 offset:{L_XN}
      ds_read_b128 {vr(12)}, v10 offset:{L_XN+128}
      ds_read_b32 v10, v11 offset:{L_XN+256}
      v_mov_b32 v11, 0
      s_waitcnt vmcnt(10) lgkmcnt(0)""")
    W0ACC = 88
    stamp(4)
    mma8(16, 120, W0ACC, True, sets=(124, 4))
    A("s_waitcnt vmcnt(2)")
    stamp(5)
    mma8(48, 12, W0ACC, False, sets=(124, 4))
    A(f"""v_mov_b32 v5, {L_TAG}
      ds_read_b32 v{DD+1}, v5
      v_mov_b32 v17, 0
      v_mov_b32 v19, 0
      s_waitcnt vmcnt(0)""")
    for dd in range(8):
        t = 16 + (dd & 1) * 2
        sel = S_PLO if (dd & 1) == 0 else S_PHI
        A(f"v_perm_b32 v{t}, v{84+(dd>>1)}, v{80+(dd>>1)}, s{sel}")
        A(f"v_mfma_f32_16x16x16_bf16 {vr(W0ACC+dd*4)}, v[10:11], v[{t}:{t+1}], {vr(W0ACC+dd*4)}")
    A("s_waitcnt lgkmcnt(0)")
    publish64(W0ACC, 9, S_WS)
    lds_set(F_QP)
    stamp(3)
    A("s_branch L_DONE")

    A.label("L_W1")
    A(f"""v_lshlrev_b32 v5, 4, v0
      v_mov_b32 v20, 0
      v_mov_b32 v21, 0
      v_mov_b32 v22, 0
      v_mov_b32 v23, 0
      global_load_dwordx4 {vr(16)}, v5, {sp(S_X)}
      s_mov_b64 exec, 0xff
      global_load_dwordx4 {vr(20)}, v5, {sp(S_X)} offset:1024
      s_mov_b64 exec, -1
      s_load_dword s48, {sp(S_WS)}, {WS_EPOCH}
      s_barrier
      s_waitcnt vmcnt(0)""")
    stamp(1)
    for i in range(8):
        A(f"v_lshlrev_b32 v{24+2*i}, 16, v{16+i}\n v_and_b32 v{25+2*i}, 0xffff0000, v{16+i}")
    A("v_add_f32 v40, v24, v25")
    for i in range(26, 40): A(f"v_add_f32 v40, v40, v{i}")
    rowred("add", 40); crossrow("add", 40, 41)
    A(f"v_mul_f32 v40, {f2u(1.0/576):#x}, v40")
    A("v_sub_f32 v42, v24, v40\n v_mul_f32 v41, v42, v42")
    for i in range(25, 32):
        A(f"v_sub_f32 v42, v{i}, v40\n v_fmac_f32 v41, v42, v42")
    A("s_mov_b64 exec, 0xff")
    for i in range(32, 40):
        A(f"v_sub_f32 v42, v{i}, v40\n v_fmac_f32 v41, v42, v42")
    A("s_mov_b64 exec, -1")
    rowred("add", 41); crossrow("add", 41, 42)
    A(f"v_mul_f32 v41, {f2u(1.0/576):#x}, v41")
    rne(40, 40); rne(41, 41)
    A(f"v_add_f32 v41, {f2u(1e-5):#x}, v41")
    rne(41, 41)
    A("v_sqrt_f32 v41, v41")
    rne(41, 41)
    A("v_rcp_f32 v41, v41")
    for i in range(8):
        a, b = 24+2*i, 25+2*i
        A(f"""v_sub_f32 v{a}, v{a}, v40
          v_sub_f32 v{b}, v{b}, v40
          v_cvt_pk_bf16_f32 v{a}, v{a}, v{b}
          v_and_b32 v{b}, 0xffff0000, v{a}
          v_lshlrev_b32 v{a}, 16, v{a}
          v_mul_f32 v{a}, v{a}, v41
          v_mul_f32 v{b}, v{b}, v41
          v_cvt_pk_bf16_f32 v{16+i}, v{a}, v{b}""")
    A(f"""ds_write_b128 v5, {vr(16)} offset:{L_XN}
      s_mov_b64 exec, 0xff
      ds_write_b128 v5, {vr(20)} offset:{L_XN+1024}
      s_mov_b64 exec, -1
      s_waitcnt lgkmcnt(0)
      s_add_u32 s48, s48, {PHI}
      v_mov_b32 v14, s48
      v_mov_b32 v6, {L_TAG}
      ds_write_b32 v6, v14""")
    lds_set(F_XN)
    stamp(2)
    A(f"""s_lshl_b32 s45, s{S_H}, 13
      s_add_u32 s45, s45, {WS_QP}
      v_lshlrev_b32 v7, 4, v0
      v_add_u32 v7, s45, v7
      v_add_u32 v8, 4096, v7""")
    lds_wait(F_QP)
    A.label("L_QSW")
    for r in range(4):
        for hh in range(2):
            off = r*2048 + hh*1024
            A(f"global_load_dwordx4 {vr(16+(r*2+hh)*4)}, v{7 if off < 4096 else 8}, {sp(S_WS)} offset:{off & 4095} sc1")
    A("s_waitcnt vmcnt(0)")
    tagcheck(14, [16+4*i+1 for i in range(8)] + [16+4*i+3 for i in range(8)], 48, 49, 50, "L_QSW")
    for hh in range(2):
        for e in (0, 2):
            d = 52+hh*2+e//2
            A(f"v_add_f32 v{d}, v{16+hh*4+e}, v{16+(2+hh)*4+e}")
            A(f"v_add_f32 v{d}, v{d}, v{16+(4+hh)*4+e}")
            A(f"v_add_f32 v{d}, v{d}, v{16+(6+hh)*4+e}")
    A("v_cvt_pk_bf16_f32 v52, v52, v53\n v_cvt_pk_bf16_f32 v54, v54, v55")
    A(f"""v_lshrrev_b32 v9, 5, v0
      v_lshlrev_b32 v9, 7, v9
      v_lshl_add_u32 v9, v4, 4, v9
      v_bfe_u32 v10, v0, 3, 2
      v_lshl_add_u32 v9, v10, 2, v9
      ds_write_b32 v9, v52 offset:{L_Q}
      ds_write_b32 v9, v54 offset:{L_Q+256}""")
    lds_set(F_Q)
    stamp(3)
    A(f"""s_lshl_b32 s45, s{S_RBO}, 13
      s_add_u32 s45, s45, {WS_OP}
      v_lshlrev_b32 v7, 3, v0
      v_add_u32 v7, s45, v7
      v_add_u32 v8, 4096, v7
      s_lshr_b32 s45, s{S_RBO}, 1
      s_lshl_b32 s45, s45, 8
      s_add_u32 s45, s45, {WS_OS}
      v_lshlrev_b32 v9, 4, v2
      v_add_u32 v9, s45, v9""")
    lds_wait(F_OP, vtmp=10, vaddr=11)
    A.label("L_OSW")
    A(f"global_load_dwordx4 {vr(48)}, v9, {sp(S_WS)} sc1")
    for s in range(16):
        off = s*512
        A(f"global_load_dwordx2 v[{16+2*s}:{17+2*s}], v{7 if off < 4096 else 8}, {sp(S_WS)} offset:{off & 4095} sc1")
    A("s_waitcnt vmcnt(0)")
    tagcheck(14, [49, 51] + [17+2*s for s in range(16)], 52, 53, 54, "L_OSW")
    stamp(4)
    A("v_mov_b32 v52, v48")
    rowred("max", 52)
    A("v_sub_f32 v52, v48, v52\n v_exp_f32 v52, v52\n v_mul_f32 v53, v52, v50")
    rowred("add", 53)
    A("v_rcp_f32 v53, v53\n v_mul_f32 v52, v52, v53")
    for s in range(16):
        A(f"v_readlane_b32 s{48+s}, v52, {s}")
    A("v_mul_f32 v55, s48, v16")
    for s in range(1, 16):
        A(f"v_fmac_f32 v55, s{48+s}, v{16+2*s}")
    A(f"""v_cvt_pk_bf16_f32 v55, v55, v55
      v_lshrrev_b32 v9, 3, v0
      v_lshl_add_u32 v9, v4, 3, v9
      v_lshlrev_b32 v9, 1, v9
      ds_write_b16 v9, v55 offset:{L_O}""")
    lds_set(F_O)
    stamp(5)
    A(f"""s_cmp_ge_u32 s{S_KK}, 27
      s_cbranch_scc1 L_DONE
      s_mul_i32 s45, s{S_CB}, 3072
      s_add_u32 s45, s45, {WS_HP}
      v_lshlrev_b32 v7, 4, v0
      v_add_u32 v7, s45, v7""")
    lds_wait(F_GP, vtmp=10, vaddr=11)
    A.label("L_HSW")
    for r in range(3):
        A(f"global_load_dwordx4 {vr(16+4*r)}, v7, {sp(S_WS)} offset:{r*1024} sc1")
    A("s_waitcnt vmcnt(0)")
    tagcheck(14, [17, 19, 21, 23, 25, 27], 52, 53, 54, "L_HSW")
    stamp(6)
    A("""v_add_f32 v16, v16, v20
      v_add_f32 v18, v18, v22
      v_add_f32 v16, v16, v24
      v_add_f32 v18, v18, v26""")
    rne(16, 16); rne(18, 18)
    silu(16, 20)
    rne(16, 16)
    A(f"""v_mul_f32 v16, v16, v18
      v_cvt_pk_bf16_f32 v16, v16, v16
      v_lshlrev_b32 v9, 1, v0
      ds_write_b16 v9, v16 offset:{L_H}""")
    lds_set(F_H)
    stamp(7)
    A("s_branch L_DONE")

    A.label("L_GV")
    A(f"""s_sub_u32 s50, s{S_W}, 2
      s_cmp_ge_u32 s{S_KK}, 27
      s_cbranch_scc1 L_GVB""")
    row_of_lane(5)
    A(f"""s_lshr_b32 s44, s50, 1
      s_mul_i32 s45, s{S_RT}, 3
      s_add_u32 s45, s45, s44
      s_lshl_b32 s51, s45, 6
      v_add_u32 v5, s51, v5
      s_mov_b32 s44, 9216
      v_mul_lo_u32 v9, v5, s44
      v_lshl_add_u32 v9, v4, 4, v9
      s_lshl_b32 s44, s{S_CB}, 7
      v_add_u32 v9, s44, v9
      s_bitcmp1_b32 s50, 0
      s_cselect_b32 s48, s{S_WU}, s{S_WG}
      s_cselect_b32 s49, s{S_WU+1}, s{S_WG+1}""")
    arow_of_lane(10)
    A("v_add_u32 v10, s51, v10\n v_lshlrev_b32 v10, 1, v10")
    lds_wait(C_VISS, 8, vtmp=7, vaddr=8)
    stamp(2)
    for i in range(8):
        A(f"global_load_dwordx4 {vr(TILE+4*i)}, v9, s[48:49]{NT}")
        if i < 7: A("v_add_u32 v9, 9216, v9")
    lds_wait(F_XN, vtmp=7, vaddr=8)
    A(f"ds_read_b128 {vr(AF)}, v10 offset:{L_XN}\n s_waitcnt vmcnt(0) lgkmcnt(0)")
    stamp(3)
    mma8(TILE, AF, ACC, True)
    for dd in range(8):
        A(f"v_add_f32_dpp v{TILE+dd}, v{ACC+dd*4+1}, v{ACC+dd*4} row_ror:8 row_mask:0xf bank_mask:0xf")
    A(f"""s_lshl_b32 s44, s50, 8
      v_lshlrev_b32 v6, 5, v4
      v_add_u32 v6, s44, v6
      s_mov_b64 exec, 0xff
      ds_write_b128 v6, {vr(TILE)} offset:{L_GU}
      ds_write_b128 v6, {vr(TILE+4)} offset:{L_GU+16}
      s_mov_b64 exec, -1""")
    lds_count(C_GU)
    A(f"""s_cmp_lg_u32 s44, 5
      s_cbranch_scc1 L_DONE
      v_lshlrev_b32 v6, 2, v0""")
    for v in range(6):
        A(f"ds_read_b32 v{16+v}, v6 offset:{L_GU+v*256}")
    A(f"""v_mov_b32 v7, {L_TAG}
      ds_read_b32 v25, v7
      s_mul_i32 s44, s{S_CB}, 3
      s_add_u32 s44, s44, s{S_RT}
      s_lshl_b32 s44, s44, 10
      s_add_u32 s44, s44, {WS_HP}
      v_lshlrev_b32 v6, 4, v0
      v_add_u32 v6, s44, v6
      s_waitcnt lgkmcnt(0)
      v_add_f32 v24, v16, v18
      v_add_f32 v26, v17, v19
      v_add_f32 v24, v24, v20
      v_add_f32 v26, v26, v21
      v_mov_b32 v27, v25
      global_store_dwordx4 v6, {vr(24)}, {sp(S_WS)} sc1""")
    lds_set(F_GP)
    stamp(4)
    A("s_branch L_DONE")
    A.label("L_GVB")
    lds_wait(C_VISS, 8, vtmp=7, vaddr=8)
    stamp(2)
    tile1152(None, 50, S_WO, WS_PO, S_RBO, F_O, L_O)
    A("s_mov_b32 s55, 0\n s_branch L_TASK2")

    A.label("L_ATT")
    A(f"""s_sub_u32 s50, s{S_W}, 8
      s_lshl_b32 s44, s{S_H}, 24
      s_lshl_b32 s45, s{S_S}, 8
      s_lshl_b32 s46, s50, 5
      s_add_u32 s45, s45, s46
      s_add_u32 s45, s45, 61440
      s_lshl_b32 s45, s45, 8
      s_add_u32 s44, s44, s45
      s_add_u32 s56, s{S_K}, s44
      s_addc_u32 s57, s{S_K+1}, 0
      s_add_u32 s58, s{S_V}, s44
      s_addc_u32 s59, s{S_V+1}, 0
      v_lshlrev_b32 v5, 8, v2
      v_lshl_add_u32 v5, v1, 4, v5
      v_add_u32 v6, 4096, v5
      v_lshlrev_b32 v7, 10, v1
      v_lshl_add_u32 v7, v2, 4, v7
      v_add_u32 v8, 4096, v7""")
    for t in range(2):
        for i in range(4):
            throttle(t*4+i)
            A(f"global_load_dwordx4 {vr(16+(t*4+i)*4)}, v{5+t}, s[56:57] offset:{i*64}{NT}")
    for i in range(8):
        throttle(8+i)
        A(f"global_load_dwordx4 {vr(48+i*4)}, v{7+(i>>2)}, s[58:59] offset:{(i&3)*256}{NT}")
    lds_count(C_VISS)
    stamp(2)
    lds_wait(F_Q)
    stamp(3)
    A(f"""v_and_b32 v5, 1, v0
      v_lshlrev_b32 v5, 8, v5
      v_lshl_add_u32 v5, v1, 4, v5""")
    for i in range(4):
        A(f"ds_read_b128 {vr(80+4*i)}, v5 offset:{L_Q+64*i}")
    A("s_waitcnt vmcnt(8) lgkmcnt(0)")
    for i in range(4):
        for t in range(2):
            c = "0" if i == 0 else vr(112+4*t)
            A(f"v_mfma_f32_16x16x32_bf16 {vr(112+4*t)}, {vr(16+(t*4+i)*4)}, {vr(80+4*i)}, {c}")
    A("""v_max3_f32 v9, v112, v113, v114
      v_max3_f32 v9, v9, v115, v116
      v_max3_f32 v9, v9, v117, v118
      v_max_f32 v9, v9, v119""")
    crossrow("max", 9, 10)
    A(f"s_mov_b32 s44, {f2u(CSC):#x}\n v_mul_f32 v9, s44, v9")
    for r in range(8):
        A(f"v_fma_f32 v{112+r}, v{112+r}, s44, -v9\n v_exp_f32 v{112+r}, v{112+r}")
    A("v_add_f32 v10, v112, v113")
    for r in range(2, 8): A(f"v_add_f32 v10, v10, v{112+r}")
    for p in range(4):
        A(f"v_cvt_pk_bf16_f32 v{120+p}, v{112+2*p}, v{113+2*p}")
    crossrow("add", 10, 11)
    A("v_mov_b32 v12, v9\n v_mov_b32 v13, v10")
    stamp(4)
    A(f"""s_mov_b32 s55, 0
      s_cmp_ge_u32 s{S_KK}, 27
      s_cbranch_scc1 L_AT2B
      s_cmp_gt_u32 s50, 3
      s_cbranch_scc1 L_AT2N
      s_mov_b32 s51, s{S_LINE}
      s_cmp_eq_u32 s50, 3
      s_cbranch_scc1 L_AT2WO
      s_mul_i32 s51, s{S_RT}, 3
      s_add_u32 s51, s51, s50""")
    tile1152(None, 51, S_WD, WS_PD, S_CB, F_H, L_H)
    A("s_mov_b32 s55, 1\n s_waitcnt vmcnt(8)\n s_branch L_PV")
    A.label("L_AT2B")
    A(f"""s_cmp_gt_u32 s50, 2
      s_cbranch_scc1 L_AT2N
      s_add_u32 s51, s50, 6""")
    A.label("L_AT2WO")
    tile1152(None, 51, S_WO, WS_PO, S_RBO, F_O, L_O)
    A("s_mov_b32 s55, 1\n s_waitcnt vmcnt(8)\n s_branch L_PV")
    A.label("L_AT2N")
    A("s_waitcnt vmcnt(0)")
    A.label("L_PV")
    stamp(5)
    mma8(48, 120, ACC, True)
    A(f"""s_lshl_b32 s44, s50, 10
      s_add_u32 s44, s44, {L_ATT}
      v_bfe_u32 v5, v0, 1, 2
      v_lshlrev_b32 v5, 4, v5
      v_lshl_add_u32 v5, v3, 3, v5
      v_and_b32 v6, 1, v0
      v_lshl_add_u32 v5, v6, 2, v5
      v_add_u32 v5, s44, v5
      s_lshl_b32 s44, s50, 3
      v_lshlrev_b32 v6, 6, v6
      v_add_u32 v6, s44, v6
      s_mov_b64 exec, 0xffff""")
    for dd in range(8):
        A(f"ds_write2_b32 v5, v{ACC+dd*4}, v{ACC+dd*4+1} offset0:{dd*16} offset1:{128+dd*16}")
    A(f"""s_mov_b64 exec, 3
      ds_write_b64 v6, v[12:13] offset:{L_ST}
      s_mov_b64 exec, -1""")
    lds_count(C_ATT)
    A(f"""s_cmp_lg_u32 s44, 7
      s_cbranch_scc1 L_ATC
      v_lshlrev_b32 v5, 4, v0
      v_lshrrev_b32 v6, 5, v0
      v_lshlrev_b32 v7, 6, v6""")
    for w in range(8):
        A(f"ds_read_b128 {vr(48+4*w)}, v5 offset:{L_ATT+w*1024}")
    for i in range(4):
        A(f"ds_read_b128 {vr(80+4*i)}, v7 offset:{L_ST+16*i}")
    A(f"""v_mov_b32 v8, {L_TAG}
      ds_read_b32 v101, v8
      s_lshl_b32 s44, s{S_H}, 2
      s_lshl_b32 s44, s44, 13
      s_lshl_b32 s45, s{S_S}, 9
      s_add_u32 s44, s44, s45
      s_add_u32 s44, s44, {WS_OP}
      v_lshlrev_b32 v9, 14, v6
      v_and_b32 v10, 31, v0
      v_lshl_add_u32 v9, v10, 4, v9
      v_add_u32 v9, s44, v9
      v_add_u32 v10, 8192, v9
      s_lshl_b32 s44, s{S_H}, 9
      s_lshl_b32 s45, s{S_S}, 4
      s_add_u32 s44, s44, s45
      s_add_u32 s44, s44, {WS_OS}
      v_lshlrev_b32 v11, 8, v6
      v_add_u32 v11, s44, v11
      s_waitcnt lgkmcnt(0)
      v_max3_f32 v96, v80, v82, v84
      v_max3_f32 v96, v96, v86, v88
      v_max3_f32 v96, v96, v90, v92
      v_max_f32 v96, v96, v94""")
    for w in range(8):
        A(f"v_sub_f32 v{80+2*w}, v{80+2*w}, v96\n v_exp_f32 v{80+2*w}, v{80+2*w}")
    A("v_mul_f32 v98, v80, v81")
    for w in range(1, 8): A(f"v_fmac_f32 v98, v{80+2*w}, v{81+2*w}")
    for e in range(4):
        A(f"v_mul_f32 v{100+2*e}, v80, v{48+e}")
    for w in range(1, 8):
        for e in range(4):
            A(f"v_fmac_f32 v{100+2*e}, v{80+2*w}, v{48+4*w+e}")
    A(f"""v_mov_b32 v103, v101
      v_mov_b32 v105, v101
      v_mov_b32 v107, v101
      v_mov_b32 v97, v101
      v_mov_b32 v99, v101
      global_store_dwordx4 v9, {vr(100)}, {sp(S_WS)} sc1
      global_store_dwordx4 v10, {vr(104)}, {sp(S_WS)} sc1
      s_mov_b32 s46, 1
      s_mov_b32 s47, 1
      s_mov_b64 exec, s[46:47]
      global_store_dwordx4 v11, {vr(96)}, {sp(S_WS)} sc1
      s_mov_b64 exec, -1""")
    lds_set(F_OP)
    A.label("L_ATC")
    stamp(6)
    A("s_cmp_eq_u32 s55, 0\n s_cbranch_scc1 L_FINCHK")

    A.label("L_TASK2")
    arow_of_lane(5)
    A(f"""v_lshlrev_b32 v10, 1, v5
      v_add_u32 v10, s53, v10
      v_lshlrev_b32 v9, 7, v1
      v_lshl_add_u32 v9, v4, 4, v9
      v_add_u32 v9, s54, v9
      v_mov_b32 v6, s52""")
    lw = L("W"); ld = L("WD")
    A.label(lw)
    A(f"""ds_read_b32 v5, v6
      s_waitcnt lgkmcnt(0)
      v_readfirstlane_b32 s44, v5
      s_cmp_lg_u32 s44, 0
      s_cbranch_scc1 {ld}
      s_sleep 1
      s_sub_u32 s79, s79, 1
      s_cbranch_scc0 {lw}
      s_branch L_DONE""")
    A.label(ld)
    stamp(7)
    A(f"""ds_read_b128 {vr(AF)}, v10
      v_mov_b32 v5, {L_TAG}
      ds_read_b32 v{DD+1}, v5
      s_waitcnt vmcnt(0) lgkmcnt(0)""")
    mma8(TILE, AF, ACC, True)
    publish64(ACC, 9, S_WS)
    stamp(8)
    A("s_cmp_eq_u32 s55, 0\n s_cbranch_scc1 L_DONE")

    A.label("L_FINCHK")
    A(f"""s_cmp_lt_u32 s2, 216
      s_cbranch_scc1 L_DONE""")
    A(f"""s_sub_u32 s60, s{S_KK}, 27
      s_lshl_b32 s60, s60, 3
      s_add_u32 s60, s60, s{S_XC}
      s_cmp_ge_u32 s60, 36
      s_cbranch_scc1 L_DONE
      s_lshl_b32 s61, s60, 7
      v_lshrrev_b32 v5, 3, v0
      s_lshl_b32 s44, s50, 3
      v_add_u32 v6, s44, v5
      v_mul_u32_u24 v6, 4608, v6
      v_lshl_add_u32 v6, v4, 4, v6
      v_add_u32 v6, s61, v6
      v_add_u32 v6, {WS_PO}, v6
      s_mul_i32 s44, s50, 9
      v_add_u32 v7, s44, v5
      v_mul_u32_u24 v7, 4608, v7
      v_lshl_add_u32 v7, v4, 4, v7
      v_add_u32 v7, s61, v7
      v_add_u32 v7, {WS_PD}, v7
      s_add_u32 s44, s44, 8
      s_mul_i32 s44, s44, 4608
      s_add_u32 s44, s44, s61
      s_add_u32 s44, s44, {WS_PD}
      v_lshlrev_b32 v8, 4, v4
      v_add_u32 v8, s44, v8
      v_mov_b32 v9, {L_TAG}
      ds_read_b32 v14, v9
      s_lshr_b32 s62, s60, 2
      s_lshl_b32 s62, s62, 7
      s_and_b32 s44, s60, 3
      s_lshl_b32 s44, s44, 2
      s_add_u32 s62, s62, s44
      v_lshlrev_b32 v10, 4, v4
      v_add_u32 v10, s62, v10
      global_load_dword v15, v10, {sp(S_X)}
      s_waitcnt lgkmcnt(0)
      v_mov_b32 v24, 0
      v_mov_b32 v25, v14
      v_mov_b32 v26, 0
      v_mov_b32 v27, v14""")
    A.label("L_FSW")
    A(f"""global_load_dwordx4 {vr(16)}, v6, {sp(S_WS)} sc1
      global_load_dwordx4 {vr(20)}, v7, {sp(S_WS)} sc1
      s_mov_b64 exec, 0xff
      global_load_dwordx4 {vr(24)}, v8, {sp(S_WS)} sc1
      s_mov_b64 exec, -1
      s_waitcnt vmcnt(0)""")
    tagcheck(14, [17, 19, 21, 23, 25, 27], 28, 29, 30, "L_FSW")
    stamp(9)
    A(f"""v_add_f32 v20, v20, v24
      v_add_f32 v22, v22, v26
      v_lshlrev_b32 v9, 4, v4
      ds_add_f32 v9, v16 offset:{L_FACC}
      ds_add_f32 v9, v18 offset:{L_FACC+4}
      ds_add_f32 v9, v20 offset:{L_FACC+8}
      ds_add_f32 v9, v22 offset:{L_FACC+12}""")
    lds_count(C_FIN)
    A(f"""s_cmp_lg_u32 s44, 7
      s_cbranch_scc1 L_DONE
      ds_read_b128 {vr(16)}, v9 offset:{L_FACC}
      s_waitcnt lgkmcnt(0)""")
    for e in range(2):
        rne(16+e, 16+e); rne(18+e, 18+e)
        silu(18+e, 20)
        rne(18+e, 18+e)
        A(f"v_mul_f32 v{16+e}, v{16+e}, v{18+e}")
        rne(16+e, 16+e)
    A(f"""v_lshlrev_b32 v20, 16, v15
      v_and_b32 v21, 0xffff0000, v15
      v_add_f32 v16, v16, v20
      v_add_f32 v17, v17, v21
      v_cvt_pk_bf16_f32 v16, v16, v17
      s_mov_b64 exec, 0xff
      global_store_dword v10, v16, {sp(S_OUT)}
      s_mov_b64 exec, -1
      s_cmp_lg_u32 s60, 0
      s_cbranch_scc1 L_DONE
      v_mov_b32 v5, {WS_EPOCH}
      s_mov_b64 exec, 1
      global_store_dword v5, v14, {sp(S_WS)}
      s_mov_b64 exec, -1""")
    A.label("L_DONE")
    if opts.get("dbgtime"):
        A(f"""s_memrealtime s[98:99]
          s_waitcnt lgkmcnt(0)
          s_mov_b64 exec, 1
          v_mov_b32 v5, 0
          v_mov_b32 v6, s98
          s_sub_u32 s96, 0, s96
          v_mov_b32 v7, s96
          global_atomic_umax v5, v6, {sp(S_DBG)} sc1
          global_atomic_umax v5, v7, {sp(S_DBG)} offset:4 sc1
          s_mov_b64 exec, -1""")
    if stamps:
        A(f"""s_memrealtime s[100:101]
          s_lshl_b32 s44, s2, 4
          s_add_u32 s44, s44, s{S_W}
          s_lshl_b32 s44, s44, 7
          s_add_u32 s44, s44, {STAMP}
          s_add_u32 s44, s{S_WS}, s44
          s_addc_u32 s45, s{S_WS+1}, 0
          s_waitcnt lgkmcnt(0)
          v_mov_b32 v5, 0""")
        for i in range(11):
            A(f"v_mov_b32 v6, s{80+2*i}\n v_mov_b32 v7, s{81+2*i}\n global_store_dwordx2 v5, v[6:7], s[44:45] offset:{i*8}")
    A.label("L_END")
    A("s_endpgm")
    body, npad = A.finish()
    name = NAME + "_kernel"
    s = HDR + f"; @launch grid=(256,1,1) block=(1024,1,1) lds={LDS_BYTES}\n"
    s += '.amdgcn_target "amdgcn-amd-amdhsa--gfx950"\n.text\n'
    s += f".globl {name}\n.p2align 8\n.type {name},@function\n{name}:\n" + body
    s += '.section .rodata,"a"\n.p2align 6\n'
    s += f".amdhsa_kernel {name}\n  .amdhsa_next_free_vgpr 128\n  .amdhsa_next_free_sgpr 102\n  .amdhsa_accum_offset 128\n"
    s += "  .amdhsa_group_segment_fixed_size 0\n  .amdhsa_kernarg_size 96\n  .amdhsa_user_sgpr_count 2\n  .amdhsa_user_sgpr_kernarg_segment_ptr 1\n  .amdhsa_system_sgpr_workgroup_id_x 1\n.end_amdhsa_kernel\n"
    return s, npad

if __name__ == "__main__":
    s, n = gen(stamps=False, opts=dict(win=None, dbgtime=True)); open("k2d.s", "w").write(s)
```

```python
import sys, struct
from hz import Asm
from asmlib import HDR, NAME

PHI = 0x9E3779B9
WS_EPOCH = 0
WS_QP = 0x10000
WS_OS = 0x38000
WS_OP = 0x40000
WS_HP = 0xC0000
WS_PD = 0x100000
WS_PO = 0x160000
STAMP = 0x30000000
F_XN, F_Q, C_ATT, C_GU, C_VISS, F_O, F_H, C_FIN, L_TAG, F_QP, F_OP, F_GP = 0, 4, 8, 12, 16, 20, 24, 28, 32, 36, 40, 44
L_FACC = 64
L_XN = 0x100; L_Q = 0x600; L_O = 0x800; L_H = 0x880; L_GU = 0x900; L_ATT = 0x1000; L_ST = 0x3000
LDS_BYTES = 0x3100
CSC = 0.08838834764831845 * 1.4426950408889634
LOG2E = 1.4426950408889634
def f2u(x): return struct.unpack('<I', struct.pack('<f', x))[0]

S_X, S_K, S_V, S_WQ, S_WO, S_BX, S_WG, S_WU, S_WD, S_OUT, S_DBG, S_WS = 8, 10, 12, 14, 16, 18, 20, 22, 24, 26, 28, 30
S_W, S_H, S_S, S_XC, S_KK, S_PLO, S_PHI = 32, 33, 34, 35, 36, 38, 39
S_CB, S_RT, S_RBO, S_LINE = 40, 41, 42, 43
TILE = 16; ACC = 80; TMP = 112; AF = 120; DD = 124

def gen(stamps=False, nt=True, opts=None):
    opts = opts or {}
    NT = " nt" if nt else ""
    WIN = opts.get("win", None)
    def throttle(n_issued_before):
        if WIN is not None and n_issued_before >= WIN:
            A(f"s_waitcnt vmcnt({WIN-1})")
    A = Asm()
    sp = lambda n: f"s[{n}:{n+1}]"
    vr = lambda n, k=4: f"v[{n}:{n+k-1}]"
    uid = [0]
    def L(p="L"):
        uid[0] += 1; return f"{p}_{uid[0]}"
    def stamp(i):
        if stamps: A(f"s_memrealtime s[{80+2*i}:{81+2*i}]")
    def lds_wait(addr, val=None, vtmp=5, vaddr=6):
        l = L("W"); d = L("WD")
        A(f"v_mov_b32 v{vaddr}, {addr}")
        A.label(l)
        A(f"ds_read_b32 v{vtmp}, v{vaddr}")
        A("s_waitcnt lgkmcnt(0)")
        A(f"v_readfirstlane_b32 s44, v{vtmp}")
        A("s_cmp_lg_u32 s44, 0" if val is None else f"s_cmp_eq_u32 s44, {val}")
        A(f"s_cbranch_scc1 {d}")
        A("s_sleep 1")
        A("s_sub_u32 s79, s79, 1")
        A(f"s_cbranch_scc0 {l}")
        A("s_branch L_DONE")
        A.label(d)
    def lds_set(addr, vt=5, va=6):
        A(f"s_waitcnt lgkmcnt(0)\n v_mov_b32 v{va}, {addr}\n v_mov_b32 v{vt}, 1\n ds_write_b32 v{va}, v{vt}")
    def lds_count(addr, vt=5, va=6):
        A(f"""s_waitcnt lgkmcnt(0)
          v_mov_b32 v{va}, {addr}
          v_mov_b32 v{vt}, 1
          s_mov_b64 exec, 1
          ds_add_rtn_u32 v{vt}, v{va}, v{vt}
          s_waitcnt lgkmcnt(0)
          v_readfirstlane_b32 s44, v{vt}
          s_mov_b64 exec, -1""")
    def mma8(tile, af, acc, first, sets=(TMP, TMP+4)):
        def P(dd):
            t = sets[dd & 1]
            sel = S_PLO if (dd & 1) == 0 else S_PHI
            for p in range(4):
                A(f"v_perm_b32 v{t+p}, v{tile+(2*p+1)*4+(dd>>1)}, v{tile+(2*p)*4+(dd>>1)}, s{sel}")
        def M(dd):
            t = sets[dd & 1]
            c = "0" if first else vr(acc+dd*4)
            A(f"v_mfma_f32_16x16x32_bf16 {vr(acc+dd*4)}, {vr(af)}, {vr(t)}, {c}")
        P(0); P(1)
        for dd in range(8):
            M(dd)
            if dd+2 < 8: P(dd+2)
    def publish64(acc, voff, base_s):
        for k in range(4):
            A(f"v_add_f32_dpp v{DD}, v{acc+(2*k)*4+1}, v{acc+(2*k)*4} row_ror:8 row_mask:{1<<k:#x} bank_mask:0xf")
            A(f"v_add_f32_dpp v{DD+2}, v{acc+(2*k+1)*4+1}, v{acc+(2*k+1)*4} row_ror:8 row_mask:{1<<k:#x} bank_mask:0xf")
        A(f"v_mov_b32 v{DD+3}, v{DD+1}")
        A("s_mov_b32 s46, 0x00ff00ff\n s_mov_b32 s47, 0x00ff00ff\n s_mov_b64 exec, s[46:47]")
        A(f"global_store_dwordx4 v{voff}, {vr(DD)}, {sp(base_s)} sc1")
        A("s_mov_b64 exec, -1")
    def rowred(op, v):
        for r in (8, 4, 2, 1):
            A(f"v_{op}_f32_dpp v{v}, v{v}, v{v} row_ror:{r} row_mask:0xf bank_mask:0xf")
    def crossrow(op, v, t):
        A(f"v_mov_b32 v{t}, v{v}\n v_permlane16_swap_b32 v{v}, v{t}\n v_{op}_f32 v{v}, v{v}, v{t}")
        A(f"v_mov_b32 v{t}, v{v}\n v_permlane32_swap_b32 v{v}, v{t}\n v_{op}_f32 v{v}, v{v}, v{t}")
    def rne(dst, src):
        A(f"v_cvt_pk_bf16_f32 v{dst}, v{src}, v{src}\n v_lshlrev_b32 v{dst}, 16, v{dst}")
    def silu(v, t):
        A(f"""v_mul_f32 v{t}, {f2u(-LOG2E):#x}, v{v}
          v_exp_f32 v{t}, v{t}
          v_add_f32 v{t}, 1.0, v{t}
          v_rcp_f32 v{t}, v{t}
          v_mul_f32 v{v}, v{v}, v{t}""")
    def tagcheck(tagv, regs, acc, t1, t2, retry):
        first = True
        for i in range(0, len(regs), 2):
            A(f"v_xor_b32 v{t1}, v{tagv}, v{regs[i]}")
            if i+1 < len(regs):
                A(f"v_xor_b32 v{t2}, v{tagv}, v{regs[i+1]}")
                A(f"v_or_b32 v{acc}, v{t1}, v{t2}" if first else f"v_or3_b32 v{acc}, v{acc}, v{t1}, v{t2}")
            else:
                A(f"v_mov_b32 v{acc}, v{t1}" if first else f"v_or_b32 v{acc}, v{acc}, v{t1}")
            first = False
        ok = L("OK")
        A(f"v_cmp_ne_u32 vcc, 0, v{acc}")
        A(f"s_cbranch_vccz {ok}")
        A("s_sub_u32 s79, s79, 1")
        A(f"s_cbranch_scc0 {retry}")
        A("s_branch L_DONE")
        A.label(ok)
    def row_of_lane(dst):
        A(f"v_lshlrev_b32 v{dst}, 5, v3\n v_lshl_add_u32 v{dst}, v1, 3, v{dst}")
    def arow_of_lane(dst):
        A(f"v_and_b32 v{dst}, 1, v0\n v_lshlrev_b32 v{dst}, 5, v{dst}\n v_lshl_add_u32 v{dst}, v1, 3, v{dst}")
    def tile1152(rowbase_s, line_s, wbase, outbase, rb_s, flag, vec):
        row_of_lane(5)
        A(f"""s_lshl_b32 s44, s{rb_s}, 6
          v_add_u32 v6, s44, v5
          v_mul_u32_u24 v6, 1152, v6
          v_lshl_add_u32 v6, v4, 4, v6
          s_lshl_b32 s44, s{line_s}, 7
          v_add_u32 v6, s44, v6
          v_add_u32 v7, 4608, v6""")
        for i in range(8):
            A(f"global_load_dwordx4 {vr(TILE+4*i)}, v{6+(i>>2)}, {sp(wbase)} offset:{(i&3)*1152}{NT}")
        A(f"""s_mul_i32 s54, s{rb_s}, 4608
          s_lshl_b32 s44, s{line_s}, 9
          s_add_u32 s54, s54, s44
          s_add_u32 s54, s54, {outbase}
          s_mov_b32 s52, {flag}
          s_mov_b32 s53, {vec}""")

    stamp(0)
    if opts.get("dbgtime"): A("s_memrealtime s[96:97]")
    A(f"""s_cmp_ge_u32 s2, 256
      s_cbranch_scc1 L_END
      s_load_dwordx16 s[8:23], s[0:1], 0
      s_load_dwordx8 s[24:31], s[0:1], 64
      v_lshrrev_b32 v1, 6, v0
      v_and_b32 v0, 63, v0
      v_readfirstlane_b32 s{S_W}, v1
      s_and_b32 s{S_XC}, s2, 7
      s_lshr_b32 s{S_KK}, s2, 3
      s_lshr_b32 s{S_H}, s2, 7
      s_lshl_b32 s{S_H}, s{S_H}, 3
      s_add_u32 s{S_H}, s{S_H}, s{S_XC}
      s_and_b32 s{S_S}, s{S_KK}, 15
      s_mov_b32 s79, 100000
      s_mov_b32 s{S_PLO}, 0x05040100
      s_mov_b32 s{S_PHI}, 0x07060302
      v_mov_b32 v5, 0
      v_lshlrev_b32 v6, 2, v0
      ds_write_b32 v6, v5
      v_lshrrev_b32 v1, 4, v0
      v_and_b32 v2, 15, v0
      v_bfe_u32 v3, v0, 3, 1
      v_and_b32 v4, 7, v0
      s_mul_i32 s44, s{S_KK}, 11
      s_lshr_b32 s44, s44, 5
      s_mul_i32 s45, s44, 3
      s_sub_u32 s{S_RT}, s{S_KK}, s45
      s_mul_i32 s{S_CB}, s{S_XC}, 9
      s_add_u32 s{S_CB}, s{S_CB}, s44
      s_mul_i32 s44, s{S_KK}, 57
      s_lshr_b32 s44, s44, 9
      s_mul_i32 s45, s44, 9
      s_sub_u32 s{S_LINE}, s{S_KK}, s45
      s_add_u32 s44, s44, 5
      s_sub_u32 s45, s{S_KK}, 27
      s_cmp_lt_u32 s{S_KK}, 27
      s_cselect_b32 s44, s44, s45
      s_lshl_b32 s45, s{S_XC}, 2
      s_add_u32 s45, s45, s44
      s_add_u32 s46, s45, 28
      s_cmp_lt_u32 s44, 4
      s_cselect_b32 s{S_RBO}, s45, s46
      s_waitcnt lgkmcnt(0)
      s_cmp_lt_u32 s{S_W}, 2
      s_cbranch_scc1 L_W01
      s_barrier""")
    stamp(1)
    A(f"""s_cmp_ge_u32 s{S_W}, 8
      s_cbranch_scc1 L_ATT
      s_branch L_GV""")
    A.label("L_W01")
    A(f"""s_setprio 3
      s_cmp_eq_u32 s{S_W}, 1
      s_cbranch_scc1 L_W1""")

    A(f"""s_lshr_b32 s44, s{S_S}, 2
      s_mul_i32 s48, s44, 144
      s_lshl_b32 s45, s48, 13
      s_lshl_b32 s46, s{S_H}, 9
      s_add_u32 s45, s45, s46
      s_and_b32 s46, s{S_S}, 3
      s_lshl_b32 s46, s46, 7
      s_add_u32 s45, s45, s46""")
    row_of_lane(5)
    A(f"""v_lshlrev_b32 v6, 13, v5
      v_lshl_add_u32 v6, v4, 4, v6
      v_add_u32 v6, s45, v6""")
    for i in range(8):
        A(f"global_load_dwordx4 {vr(16+4*i)}, v6, {sp(S_WQ)}{NT}")
        A(f"v_add_u32 v6, {8192 if i < 7 else 57*8192}, v6")
    for i in range(8):
        A(f"global_load_dwordx4 {vr(48+4*i)}, v6, {sp(S_WQ)}{NT}")
        if i < 7: A("v_add_u32 v6, 8192, v6")
    A(f"""v_lshlrev_b32 v7, 3, v3
      v_lshl_add_u32 v7, v1, 1, v7
      v_add_u32 v8, 128, v7
      v_lshlrev_b32 v8, 13, v8
      v_lshl_add_u32 v8, v4, 4, v8
      v_add_u32 v8, s45, v8""")
    A(f"global_load_dwordx4 {vr(80)}, v8, {sp(S_WQ)}{NT}")
    A("v_add_u32 v8, 8192, v8")
    A(f"global_load_dwordx4 {vr(84)}, v8, {sp(S_WQ)}{NT}")
    A("s_barrier")
    stamp(1)
    arow_of_lane(10)
    A(f"""v_add_u32 v10, s48, v10
      v_lshlrev_b32 v10, 1, v10
      v_and_b32 v11, 1, v0
      v_lshlrev_b32 v11, 3, v11
      v_lshl_add_u32 v11, v1, 1, v11
      v_add_u32 v11, s48, v11
      v_lshlrev_b32 v11, 1, v11
      s_lshl_b32 s45, s{S_H}, 4
      s_add_u32 s45, s45, s{S_S}
      s_lshl_b32 s45, s45, 9
      s_add_u32 s45, s45, {WS_QP}
      v_lshlrev_b32 v9, 7, v1
      v_lshl_add_u32 v9, v4, 4, v9
      v_add_u32 v9, s45, v9""")
    lds_wait(F_XN)
    stamp(2)
    A(f"""ds_read_b128 {vr(120)}, v10 offset:{L_XN}
      ds_read_b128 {vr(12)}, v10 offset:{L_XN+128}
      ds_read_b32 v10, v11 offset:{L_XN+256}
      v_mov_b32 v11, 0
      s_waitcnt vmcnt(10) lgkmcnt(0)""")
    W0ACC = 88
    stamp(4)
    mma8(16, 120, W0ACC, True, sets=(124, 4))
    A("s_waitcnt vmcnt(2)")
    stamp(5)
    mma8(48, 12, W0ACC, False, sets=(124, 4))
    A(f"""v_mov_b32 v5, {L_TAG}
      ds_read_b32 v{DD+1}, v5
      v_mov_b32 v17, 0
      v_mov_b32 v19, 0
      s_waitcnt vmcnt(0)""")
    for dd in range(8):
        t = 16 + (dd & 1) * 2
        sel = S_PLO if (dd & 1) == 0 else S_PHI
        A(f"v_perm_b32 v{t}, v{84+(dd>>1)}, v{80+(dd>>1)}, s{sel}")
        A(f"v_mfma_f32_16x16x16_bf16 {vr(W0ACC+dd*4)}, v[10:11], v[{t}:{t+1}], {vr(W0ACC+dd*4)}")
    A("s_waitcnt lgkmcnt(0)")
    publish64(W0ACC, 9, S_WS)
    lds_set(F_QP)
    stamp(3)
    if opts.get("dbgtime"):
        A(f"""s_cmp_ge_u32 s2, 4
          s_cbranch_scc1 L_DONE
          s_lshl_b32 s44, s2, 2
          v_mov_b32 v5, s44
          v_mov_b32 v6, s96
          s_mov_b64 exec, 1
          global_store_dword v5, v6, {sp(S_DBG)}
          s_mov_b64 exec, -1""")
    A("s_branch L_DONE")

    A.label("L_W1")
    A(f"""v_lshlrev_b32 v5, 4, v0
      v_mov_b32 v20, 0
      v_mov_b32 v21, 0
      v_mov_b32 v22, 0
      v_mov_b32 v23, 0
      global_load_dwordx4 {vr(16)}, v5, {sp(S_X)}
      s_mov_b64 exec, 0xff
      global_load_dwordx4 {vr(20)}, v5, {sp(S_X)} offset:1024
      s_mov_b64 exec, -1
      s_load_dword s48, {sp(S_WS)}, {WS_EPOCH}
      s_barrier
      s_waitcnt vmcnt(0)""")
    stamp(1)
    for i in range(8):
        A(f"v_lshlrev_b32 v{24+2*i}, 16, v{16+i}\n v_and_b32 v{25+2*i}, 0xffff0000, v{16+i}")
    A("v_add_f32 v40, v24, v25")
    for i in range(26, 40): A(f"v_add_f32 v40, v40, v{i}")
    rowred("add", 40); crossrow("add", 40, 41)
    A(f"v_mul_f32 v40, {f2u(1.0/576):#x}, v40")
    A("v_sub_f32 v42, v24, v40\n v_mul_f32 v41, v42, v42")
    for i in range(25, 32):
        A(f"v_sub_f32 v42, v{i}, v40\n v_fmac_f32 v41, v42, v42")
    A("s_mov_b64 exec, 0xff")
    for i in range(32, 40):
        A(f"v_sub_f32 v42, v{i}, v40\n v_fmac_f32 v41, v42, v42")
    A("s_mov_b64 exec, -1")
    rowred("add", 41); crossrow("add", 41, 42)
    A(f"v_mul_f32 v41, {f2u(1.0/576):#x}, v41")
    rne(40, 40); rne(41, 41)
    A(f"v_add_f32 v41, {f2u(1e-5):#x}, v41")
    rne(41, 41)
    A("v_sqrt_f32 v41, v41")
    rne(41, 41)
    A("v_rcp_f32 v41, v41")
    for i in range(8):
        a, b = 24+2*i, 25+2*i
        A(f"""v_sub_f32 v{a}, v{a}, v40
          v_sub_f32 v{b}, v{b}, v40
          v_cvt_pk_bf16_f32 v{a}, v{a}, v{b}
          v_and_b32 v{b}, 0xffff0000, v{a}
          v_lshlrev_b32 v{a}, 16, v{a}
          v_mul_f32 v{a}, v{a}, v41
          v_mul_f32 v{b}, v{b}, v41
          v_cvt_pk_bf16_f32 v{16+i}, v{a}, v{b}""")
    A(f"""ds_write_b128 v5, {vr(16)} offset:{L_XN}
      s_mov_b64 exec, 0xff
      ds_write_b128 v5, {vr(20)} offset:{L_XN+1024}
      s_mov_b64 exec, -1
      s_waitcnt lgkmcnt(0)
      s_add_u32 s48, s48, {PHI}
      v_mov_b32 v14, s48
      v_mov_b32 v6, {L_TAG}
      ds_write_b32 v6, v14""")
    lds_set(F_XN)
    stamp(2)
    A(f"""s_lshl_b32 s45, s{S_H}, 13
      s_add_u32 s45, s45, {WS_QP}
      v_lshlrev_b32 v7, 4, v0
      v_add_u32 v7, s45, v7
      v_add_u32 v8, 4096, v7""")
    lds_wait(F_QP)
    A.label("L_QSW")
    for r in range(4):
        for hh in range(2):
            off = r*2048 + hh*1024
            A(f"global_load_dwordx4 {vr(16+(r*2+hh)*4)}, v{7 if off < 4096 else 8}, {sp(S_WS)} offset:{off & 4095} sc1")
    A("s_waitcnt vmcnt(0)")
    tagcheck(14, [16+4*i+1 for i in range(8)] + [16+4*i+3 for i in range(8)], 48, 49, 50, "L_QSW")
    for hh in range(2):
        for e in (0, 2):
            d = 52+hh*2+e//2
            A(f"v_add_f32 v{d}, v{16+hh*4+e}, v{16+(2+hh)*4+e}")
            A(f"v_add_f32 v{d}, v{d}, v{16+(4+hh)*4+e}")
            A(f"v_add_f32 v{d}, v{d}, v{16+(6+hh)*4+e}")
    A("v_cvt_pk_bf16_f32 v52, v52, v53\n v_cvt_pk_bf16_f32 v54, v54, v55")
    A(f"""v_lshrrev_b32 v9, 5, v0
      v_lshlrev_b32 v9, 7, v9
      v_lshl_add_u32 v9, v4, 4, v9
      v_bfe_u32 v10, v0, 3, 2
      v_lshl_add_u32 v9, v10, 2, v9
      ds_write_b32 v9, v52 offset:{L_Q}
      ds_write_b32 v9, v54 offset:{L_Q+256}""")
    lds_set(F_Q)
    stamp(3)
    A(f"""s_lshl_b32 s45, s{S_RBO}, 13
      s_add_u32 s45, s45, {WS_OP}
      v_lshlrev_b32 v7, 3, v0
      v_add_u32 v7, s45, v7
      v_add_u32 v8, 4096, v7
      s_lshr_b32 s45, s{S_RBO}, 1
      s_lshl_b32 s45, s45, 8
      s_add_u32 s45, s45, {WS_OS}
      v_lshlrev_b32 v9, 4, v2
      v_add_u32 v9, s45, v9""")
    lds_wait(F_OP, vtmp=10, vaddr=11)
    A.label("L_OSW")
    A(f"global_load_dwordx4 {vr(48)}, v9, {sp(S_WS)} sc1")
    for s in range(16):
        off = s*512
        A(f"global_load_dwordx2 v[{16+2*s}:{17+2*s}], v{7 if off < 4096 else 8}, {sp(S_WS)} offset:{off & 4095} sc1")
    A("s_waitcnt vmcnt(0)")
    tagcheck(14, [49, 51] + [17+2*s for s in range(16)], 52, 53, 54, "L_OSW")
    stamp(4)
    A("v_mov_b32 v52, v48")
    rowred("max", 52)
    A("v_sub_f32 v52, v48, v52\n v_exp_f32 v52, v52\n v_mul_f32 v53, v52, v50")
    rowred("add", 53)
    A("v_rcp_f32 v53, v53\n v_mul_f32 v52, v52, v53")
    for s in range(16):
        A(f"v_readlane_b32 s{48+s}, v52, {s}")
    A("v_mul_f32 v55, s48, v16")
    for s in range(1, 16):
        A(f"v_fmac_f32 v55, s{48+s}, v{16+2*s}")
    A(f"""v_cvt_pk_bf16_f32 v55, v55, v55
      v_lshrrev_b32 v9, 3, v0
      v_lshl_add_u32 v9, v4, 3, v9
      v_lshlrev_b32 v9, 1, v9
      ds_write_b16 v9, v55 offset:{L_O}""")
    lds_set(F_O)
    stamp(5)
    A(f"""s_cmp_ge_u32 s{S_KK}, 27
      s_cbranch_scc1 L_DONE
      s_mul_i32 s45, s{S_CB}, 3072
      s_add_u32 s45, s45, {WS_HP}
      v_lshlrev_b32 v7, 4, v0
      v_add_u32 v7, s45, v7""")
    lds_wait(F_GP, vtmp=10, vaddr=11)
    A.label("L_HSW")
    for r in range(3):
        A(f"global_load_dwordx4 {vr(16+4*r)}, v7, {sp(S_WS)} offset:{r*1024} sc1")
    A("s_waitcnt vmcnt(0)")
    tagcheck(14, [17, 19, 21, 23, 25, 27], 52, 53, 54, "L_HSW")
    stamp(6)
    A("""v_add_f32 v16, v16, v20
      v_add_f32 v18, v18, v22
      v_add_f32 v16, v16, v24
      v_add_f32 v18, v18, v26""")
    rne(16, 16); rne(18, 18)
    silu(16, 20)
    rne(16, 16)
    A(f"""v_mul_f32 v16, v16, v18
      v_cvt_pk_bf16_f32 v16, v16, v16
      v_lshlrev_b32 v9, 1, v0
      ds_write_b16 v9, v16 offset:{L_H}""")
    lds_set(F_H)
    stamp(7)
    A("s_branch L_DONE")

    A.label("L_GV")
    A(f"""s_sub_u32 s50, s{S_W}, 2
      s_cmp_ge_u32 s{S_KK}, 27
      s_cbranch_scc1 L_GVB""")
    row_of_lane(5)
    A(f"""s_lshr_b32 s44, s50, 1
      s_mul_i32 s45, s{S_RT}, 3
      s_add_u32 s45, s45, s44
      s_lshl_b32 s51, s45, 6
      v_add_u32 v5, s51, v5
      s_mov_b32 s44, 9216
      v_mul_lo_u32 v9, v5, s44
      v_lshl_add_u32 v9, v4, 4, v9
      s_lshl_b32 s44, s{S_CB}, 7
      v_add_u32 v9, s44, v9
      s_bitcmp1_b32 s50, 0
      s_cselect_b32 s48, s{S_WU}, s{S_WG}
      s_cselect_b32 s49, s{S_WU+1}, s{S_WG+1}""")
    arow_of_lane(10)
    A("v_add_u32 v10, s51, v10\n v_lshlrev_b32 v10, 1, v10")
    lds_wait(C_VISS, 8, vtmp=7, vaddr=8)
    stamp(2)
    for i in range(8):
        A(f"global_load_dwordx4 {vr(TILE+4*i)}, v9, s[48:49]{NT}")
        if i < 7: A("v_add_u32 v9, 9216, v9")
    lds_wait(F_XN, vtmp=7, vaddr=8)
    A(f"ds_read_b128 {vr(AF)}, v10 offset:{L_XN}\n s_waitcnt vmcnt(0) lgkmcnt(0)")
    stamp(3)
    mma8(TILE, AF, ACC, True)
    for dd in range(8):
        A(f"v_add_f32_dpp v{TILE+dd}, v{ACC+dd*4+1}, v{ACC+dd*4} row_ror:8 row_mask:0xf bank_mask:0xf")
    A(f"""s_lshl_b32 s44, s50, 8
      v_lshlrev_b32 v6, 5, v4
      v_add_u32 v6, s44, v6
      s_mov_b64 exec, 0xff
      ds_write_b128 v6, {vr(TILE)} offset:{L_GU}
      ds_write_b128 v6, {vr(TILE+4)} offset:{L_GU+16}
      s_mov_b64 exec, -1""")
    lds_count(C_GU)
    A(f"""s_cmp_lg_u32 s44, 5
      s_cbranch_scc1 L_DONE
      v_lshlrev_b32 v6, 2, v0""")
    for v in range(6):
        A(f"ds_read_b32 v{16+v}, v6 offset:{L_GU+v*256}")
    A(f"""v_mov_b32 v7, {L_TAG}
      ds_read_b32 v25, v7
      s_mul_i32 s44, s{S_CB}, 3
      s_add_u32 s44, s44, s{S_RT}
      s_lshl_b32 s44, s44, 10
      s_add_u32 s44, s44, {WS_HP}
      v_lshlrev_b32 v6, 4, v0
      v_add_u32 v6, s44, v6
      s_waitcnt lgkmcnt(0)
      v_add_f32 v24, v16, v18
      v_add_f32 v26, v17, v19
      v_add_f32 v24, v24, v20
      v_add_f32 v26, v26, v21
      v_mov_b32 v27, v25
      global_store_dwordx4 v6, {vr(24)}, {sp(S_WS)} sc1""")
    lds_set(F_GP)
    stamp(4)
    A("s_branch L_DONE")
    A.label("L_GVB")
    lds_wait(C_VISS, 8, vtmp=7, vaddr=8)
    stamp(2)
    tile1152(None, 50, S_WO, WS_PO, S_RBO, F_O, L_O)
    A("s_mov_b32 s55, 0\n s_branch L_TASK2")

    A.label("L_ATT")
    A(f"""s_sub_u32 s50, s{S_W}, 8
      s_lshl_b32 s44, s{S_H}, 24
      s_lshl_b32 s45, s{S_S}, 8
      s_lshl_b32 s46, s50, 5
      s_add_u32 s45, s45, s46
      s_add_u32 s45, s45, 61440
      s_lshl_b32 s45, s45, 8
      s_add_u32 s44, s44, s45
      s_add_u32 s56, s{S_K}, s44
      s_addc_u32 s57, s{S_K+1}, 0
      s_add_u32 s58, s{S_V}, s44
      s_addc_u32 s59, s{S_V+1}, 0
      v_lshlrev_b32 v5, 8, v2
      v_lshl_add_u32 v5, v1, 4, v5
      v_add_u32 v6, 4096, v5
      v_lshlrev_b32 v7, 10, v1
      v_lshl_add_u32 v7, v2, 4, v7
      v_add_u32 v8, 4096, v7""")
    for t in range(2):
        for i in range(4):
            throttle(t*4+i)
            A(f"global_load_dwordx4 {vr(16+(t*4+i)*4)}, v{5+t}, s[56:57] offset:{i*64}{NT}")
    for i in range(8):
        throttle(8+i)
        A(f"global_load_dwordx4 {vr(48+i*4)}, v{7+(i>>2)}, s[58:59] offset:{(i&3)*256}{NT}")
    lds_count(C_VISS)
    stamp(2)
    lds_wait(F_Q)
    stamp(3)
    A(f"""v_and_b32 v5, 1, v0
      v_lshlrev_b32 v5, 8, v5
      v_lshl_add_u32 v5, v1, 4, v5""")
    for i in range(4):
        A(f"ds_read_b128 {vr(80+4*i)}, v5 offset:{L_Q+64*i}")
    A("s_waitcnt vmcnt(8) lgkmcnt(0)")
    for i in range(4):
        for t in range(2):
            c = "0" if i == 0 else vr(112+4*t)
            A(f"v_mfma_f32_16x16x32_bf16 {vr(112+4*t)}, {vr(16+(t*4+i)*4)}, {vr(80+4*i)}, {c}")
    A("""v_max3_f32 v9, v112, v113, v114
      v_max3_f32 v9, v9, v115, v116
      v_max3_f32 v9, v9, v117, v118
      v_max_f32 v9, v9, v119""")
    crossrow("max", 9, 10)
    A(f"s_mov_b32 s44, {f2u(CSC):#x}\n v_mul_f32 v9, s44, v9")
    for r in range(8):
        A(f"v_fma_f32 v{112+r}, v{112+r}, s44, -v9\n v_exp_f32 v{112+r}, v{112+r}")
    A("v_add_f32 v10, v112, v113")
    for r in range(2, 8): A(f"v_add_f32 v10, v10, v{112+r}")
    for p in range(4):
        A(f"v_cvt_pk_bf16_f32 v{120+p}, v{112+2*p}, v{113+2*p}")
    crossrow("add", 10, 11)
    A("v_mov_b32 v12, v9\n v_mov_b32 v13, v10")
    stamp(4)
    A(f"""s_mov_b32 s55, 0
      s_cmp_ge_u32 s{S_KK}, 27
      s_cbranch_scc1 L_AT2B
      s_cmp_gt_u32 s50, 3
      s_cbranch_scc1 L_AT2N
      s_mov_b32 s51, s{S_LINE}
      s_cmp_eq_u32 s50, 3
      s_cbranch_scc1 L_AT2WO
      s_mul_i32 s51, s{S_RT}, 3
      s_add_u32 s51, s51, s50""")
    tile1152(None, 51, S_WD, WS_PD, S_CB, F_H, L_H)
    A("s_mov_b32 s55, 1\n s_waitcnt vmcnt(8)\n s_branch L_PV")
    A.label("L_AT2B")
    A(f"""s_cmp_gt_u32 s50, 2
      s_cbranch_scc1 L_AT2N
      s_add_u32 s51, s50, 6""")
    A.label("L_AT2WO")
    tile1152(None, 51, S_WO, WS_PO, S_RBO, F_O, L_O)
    A("s_mov_b32 s55, 1\n s_waitcnt vmcnt(8)\n s_branch L_PV")
    A.label("L_AT2N")
    A("s_waitcnt vmcnt(0)")
    A.label("L_PV")
    stamp(5)
    mma8(48, 120, ACC, True)
    A(f"""s_lshl_b32 s44, s50, 10
      s_add_u32 s44, s44, {L_ATT}
      v_bfe_u32 v5, v0, 1, 2
      v_lshlrev_b32 v5, 4, v5
      v_lshl_add_u32 v5, v3, 3, v5
      v_and_b32 v6, 1, v0
      v_lshl_add_u32 v5, v6, 2, v5
      v_add_u32 v5, s44, v5
      s_lshl_b32 s44, s50, 3
      v_lshlrev_b32 v6, 6, v6
      v_add_u32 v6, s44, v6
      s_mov_b64 exec, 0xffff""")
    for dd in range(8):
        A(f"ds_write2_b32 v5, v{ACC+dd*4}, v{ACC+dd*4+1} offset0:{dd*16} offset1:{128+dd*16}")
    A(f"""s_mov_b64 exec, 3
      ds_write_b64 v6, v[12:13] offset:{L_ST}
      s_mov_b64 exec, -1""")
    lds_count(C_ATT)
    A(f"""s_cmp_lg_u32 s44, 7
      s_cbranch_scc1 L_ATC
      v_lshlrev_b32 v5, 4, v0
      v_lshrrev_b32 v6, 5, v0
      v_lshlrev_b32 v7, 6, v6""")
    for w in range(8):
        A(f"ds_read_b128 {vr(48+4*w)}, v5 offset:{L_ATT+w*1024}")
    for i in range(4):
        A(f"ds_read_b128 {vr(80+4*i)}, v7 offset:{L_ST+16*i}")
    A(f"""v_mov_b32 v8, {L_TAG}
      ds_read_b32 v101, v8
      s_lshl_b32 s44, s{S_H}, 2
      s_lshl_b32 s44, s44, 13
      s_lshl_b32 s45, s{S_S}, 9
      s_add_u32 s44, s44, s45
      s_add_u32 s44, s44, {WS_OP}
      v_lshlrev_b32 v9, 14, v6
      v_and_b32 v10, 31, v0
      v_lshl_add_u32 v9, v10, 4, v9
      v_add_u32 v9, s44, v9
      v_add_u32 v10, 8192, v9
      s_lshl_b32 s44, s{S_H}, 9
      s_lshl_b32 s45, s{S_S}, 4
      s_add_u32 s44, s44, s45
      s_add_u32 s44, s44, {WS_OS}
      v_lshlrev_b32 v11, 8, v6
      v_add_u32 v11, s44, v11
      s_waitcnt lgkmcnt(0)
      v_max3_f32 v96, v80, v82, v84
      v_max3_f32 v96, v96, v86, v88
      v_max3_f32 v96, v96, v90, v92
      v_max_f32 v96, v96, v94""")
    for w in range(8):
        A(f"v_sub_f32 v{80+2*w}, v{80+2*w}, v96\n v_exp_f32 v{80+2*w}, v{80+2*w}")
    A("v_mul_f32 v98, v80, v81")
    for w in range(1, 8): A(f"v_fmac_f32 v98, v{80+2*w}, v{81+2*w}")
    for e in range(4):
        A(f"v_mul_f32 v{100+2*e}, v80, v{48+e}")
    for w in range(1, 8):
        for e in range(4):
            A(f"v_fmac_f32 v{100+2*e}, v{80+2*w}, v{48+4*w+e}")
    A(f"""v_mov_b32 v103, v101
      v_mov_b32 v105, v101
      v_mov_b32 v107, v101
      v_mov_b32 v97, v101
      v_mov_b32 v99, v101
      global_store_dwordx4 v9, {vr(100)}, {sp(S_WS)} sc1
      global_store_dwordx4 v10, {vr(104)}, {sp(S_WS)} sc1
      s_mov_b32 s46, 1
      s_mov_b32 s47, 1
      s_mov_b64 exec, s[46:47]
      global_store_dwordx4 v11, {vr(96)}, {sp(S_WS)} sc1
      s_mov_b64 exec, -1""")
    lds_set(F_OP)
    A.label("L_ATC")
    stamp(6)
    A("s_cmp_eq_u32 s55, 0\n s_cbranch_scc1 L_FINCHK")

    A.label("L_TASK2")
    arow_of_lane(5)
    A(f"""v_lshlrev_b32 v10, 1, v5
      v_add_u32 v10, s53, v10
      v_lshlrev_b32 v9, 7, v1
      v_lshl_add_u32 v9, v4, 4, v9
      v_add_u32 v9, s54, v9
      v_mov_b32 v6, s52""")
    lw = L("W"); ld = L("WD")
    A.label(lw)
    A(f"""ds_read_b32 v5, v6
      s_waitcnt lgkmcnt(0)
      v_readfirstlane_b32 s44, v5
      s_cmp_lg_u32 s44, 0
      s_cbranch_scc1 {ld}
      s_sleep 1
      s_sub_u32 s79, s79, 1
      s_cbranch_scc0 {lw}
      s_branch L_DONE""")
    A.label(ld)
    stamp(7)
    A(f"""ds_read_b128 {vr(AF)}, v10
      v_mov_b32 v5, {L_TAG}
      ds_read_b32 v{DD+1}, v5
      s_waitcnt vmcnt(0) lgkmcnt(0)""")
    mma8(TILE, AF, ACC, True)
    publish64(ACC, 9, S_WS)
    stamp(8)
    A("s_cmp_eq_u32 s55, 0\n s_cbranch_scc1 L_DONE")

    A.label("L_FINCHK")
    A(f"""s_cmp_lt_u32 s2, 216
      s_cbranch_scc1 L_DONE""")
    A(f"""s_sub_u32 s60, s{S_KK}, 27
      s_lshl_b32 s60, s60, 3
      s_add_u32 s60, s60, s{S_XC}
      s_cmp_ge_u32 s60, 36
      s_cbranch_scc1 L_DONE
      s_lshl_b32 s61, s60, 7
      v_lshrrev_b32 v5, 3, v0
      s_lshl_b32 s44, s50, 3
      v_add_u32 v6, s44, v5
      v_mul_u32_u24 v6, 4608, v6
      v_lshl_add_u32 v6, v4, 4, v6
      v_add_u32 v6, s61, v6
      v_add_u32 v6, {WS_PO}, v6
      s_mul_i32 s44, s50, 9
      v_add_u32 v7, s44, v5
      v_mul_u32_u24 v7, 4608, v7
      v_lshl_add_u32 v7, v4, 4, v7
      v_add_u32 v7, s61, v7
      v_add_u32 v7, {WS_PD}, v7
      s_add_u32 s44, s44, 8
      s_mul_i32 s44, s44, 4608
      s_add_u32 s44, s44, s61
      s_add_u32 s44, s44, {WS_PD}
      v_lshlrev_b32 v8, 4, v4
      v_add_u32 v8, s44, v8
      v_mov_b32 v9, {L_TAG}
      ds_read_b32 v14, v9
      s_lshr_b32 s62, s60, 2
      s_lshl_b32 s62, s62, 7
      s_and_b32 s44, s60, 3
      s_lshl_b32 s44, s44, 2
      s_add_u32 s62, s62, s44
      v_lshlrev_b32 v10, 4, v4
      v_add_u32 v10, s62, v10
      global_load_dword v15, v10, {sp(S_X)}
      s_waitcnt lgkmcnt(0)
      v_mov_b32 v24, 0
      v_mov_b32 v25, v14
      v_mov_b32 v26, 0
      v_mov_b32 v27, v14""")
    A.label("L_FSW")
    A(f"""global_load_dwordx4 {vr(16)}, v6, {sp(S_WS)} sc1
      global_load_dwordx4 {vr(20)}, v7, {sp(S_WS)} sc1
      s_mov_b64 exec, 0xff
      global_load_dwordx4 {vr(24)}, v8, {sp(S_WS)} sc1
      s_mov_b64 exec, -1
      s_waitcnt vmcnt(0)""")
    tagcheck(14, [17, 19, 21, 23, 25, 27], 28, 29, 30, "L_FSW")
    stamp(9)
    A(f"""v_add_f32 v20, v20, v24
      v_add_f32 v22, v22, v26
      v_lshlrev_b32 v9, 4, v4
      ds_add_f32 v9, v16 offset:{L_FACC}
      ds_add_f32 v9, v18 offset:{L_FACC+4}
      ds_add_f32 v9, v20 offset:{L_FACC+8}
      ds_add_f32 v9, v22 offset:{L_FACC+12}""")
    lds_count(C_FIN)
    A(f"""s_cmp_lg_u32 s44, 7
      s_cbranch_scc1 L_DONE
      ds_read_b128 {vr(16)}, v9 offset:{L_FACC}
      s_waitcnt lgkmcnt(0)""")
    for e in range(2):
        rne(16+e, 16+e); rne(18+e, 18+e)
        silu(18+e, 20)
        rne(18+e, 18+e)
        A(f"v_mul_f32 v{16+e}, v{16+e}, v{18+e}")
        rne(16+e, 16+e)
    A(f"""v_lshlrev_b32 v20, 16, v15
      v_and_b32 v21, 0xffff0000, v15
      v_add_f32 v16, v16, v20
      v_add_f32 v17, v17, v21
      v_cvt_pk_bf16_f32 v16, v16, v17
      s_mov_b64 exec, 0xff
      global_store_dword v10, v16, {sp(S_OUT)}
      s_mov_b64 exec, -1
      s_memrealtime s[98:99]
      s_waitcnt lgkmcnt(0)
      s_min_u32 s44, s60, 11
      s_lshl_b32 s44, s44, 2
      s_add_u32 s44, s44, 16
      v_mov_b32 v5, s44
      v_mov_b32 v6, s98
      s_mov_b64 exec, 1
      global_store_dword v5, v6, {sp(S_DBG)}
      s_mov_b64 exec, -1
      s_cmp_lg_u32 s60, 0
      s_cbranch_scc1 L_DONE
      v_mov_b32 v5, {WS_EPOCH}
      s_mov_b64 exec, 1
      global_store_dword v5, v14, {sp(S_WS)}
      s_mov_b64 exec, -1""")
    A.label("L_DONE")
    if stamps:
        A(f"""s_memrealtime s[100:101]
          s_lshl_b32 s44, s2, 4
          s_add_u32 s44, s44, s{S_W}
          s_lshl_b32 s44, s44, 7
          s_add_u32 s44, s44, {STAMP}
          s_add_u32 s44, s{S_WS}, s44
          s_addc_u32 s45, s{S_WS+1}, 0
          s_waitcnt lgkmcnt(0)
          v_mov_b32 v5, 0""")
        for i in range(11):
            A(f"v_mov_b32 v6, s{80+2*i}\n v_mov_b32 v7, s{81+2*i}\n global_store_dwordx2 v5, v[6:7], s[44:45] offset:{i*8}")
    A.label("L_END")
    A("s_endpgm")
    body, npad = A.finish()
    name = NAME + "_kernel"
    s = HDR + f"; @launch grid=(256,1,1) block=(1024,1,1) lds={LDS_BYTES}\n"
    s += '.amdgcn_target "amdgcn-amd-amdhsa--gfx950"\n.text\n'
    s += f".globl {name}\n.p2align 8\n.type {name},@function\n{name}:\n" + body
    s += '.section .rodata,"a"\n.p2align 6\n'
    s += f".amdhsa_kernel {name}\n  .amdhsa_next_free_vgpr 128\n  .amdhsa_next_free_sgpr 102\n  .amdhsa_accum_offset 128\n"
    s += "  .amdhsa_group_segment_fixed_size 0\n  .amdhsa_kernarg_size 96\n  .amdhsa_user_sgpr_count 2\n  .amdhsa_user_sgpr_kernarg_segment_ptr 1\n  .amdhsa_system_sgpr_workgroup_id_x 1\n.end_amdhsa_kernel\n"
    return s, npad

if __name__ == "__main__":
    s, n = gen(stamps=False, opts=dict(win=None, dbgtime=True)); open("k2d.s", "w").write(s)
```

```python
import sys, struct
from hz import Asm
from asmlib import HDR, NAME

PHI = 0x9E3779B9
WS_EPOCH = 0
WS_QP = 0x10000
WS_OS = 0x38000
WS_FLQ = 0x3A000
WS_FLO = 0x3B000
WS_FLH = 0x3C000
WS_OP = 0x40000
WS_HP = 0xC0000
WS_PD = 0x100000
WS_PO = 0x160000
STAMP = 0x30000000
F_XN, F_Q, C_ATT, C_GU, C_VISS, F_O, F_H, C_FIN, L_TAG, F_QP, F_OP, F_GP = 0, 4, 8, 12, 16, 20, 24, 28, 32, 36, 40, 44
L_FACC = 64
L_XN = 0x100; L_Q = 0x600; L_O = 0x800; L_H = 0x880; L_GU = 0x900; L_ATT = 0x1000; L_ST = 0x3000
LDS_BYTES = 0x3100
CSC = 0.08838834764831845 * 1.4426950408889634
LOG2E = 1.4426950408889634
def f2u(x): return struct.unpack('<I', struct.pack('<f', x))[0]

S_X, S_K, S_V, S_WQ, S_WO, S_BX, S_WG, S_WU, S_WD, S_OUT, S_DBG, S_WS = 8, 10, 12, 14, 16, 18, 20, 22, 24, 26, 28, 30
S_W, S_H, S_S, S_XC, S_KK, S_PLO, S_PHI = 32, 33, 34, 35, 36, 38, 39
S_CB, S_RT, S_RBO, S_LINE = 40, 41, 42, 43
TILE = 16; ACC = 80; TMP = 112; AF = 120; DD = 124

def gen(stamps=False, nt=True, opts=None):
    opts = opts or {}
    NT = " nt" if nt else ""
    WIN = opts.get("win", None)
    WIN2 = opts.get("win2", None)
    def throttle2(n):
        if WIN2 is not None and n >= WIN2:
            A(f"s_waitcnt vmcnt({WIN2-1})")
    def throttle(n_issued_before):
        if WIN is not None and n_issued_before >= WIN:
            A(f"s_waitcnt vmcnt({WIN-1})")
    A = Asm()
    sp = lambda n: f"s[{n}:{n+1}]"
    vr = lambda n, k=4: f"v[{n}:{n+k-1}]"
    uid = [0]
    def L(p="L"):
        uid[0] += 1; return f"{p}_{uid[0]}"
    def stamp(i):
        if stamps: A(f"s_memrealtime s[{80+2*i}:{81+2*i}]")
    def lds_wait(addr, val=None, vtmp=5, vaddr=6):
        l = L("W"); d = L("WD")
        A(f"v_mov_b32 v{vaddr}, {addr}")
        A.label(l)
        A(f"ds_read_b32 v{vtmp}, v{vaddr}")
        A("s_waitcnt lgkmcnt(0)")
        A(f"v_readfirstlane_b32 s44, v{vtmp}")
        A("s_cmp_lg_u32 s44, 0" if val is None else f"s_cmp_eq_u32 s44, {val}")
        A(f"s_cbranch_scc1 {d}")
        A("s_sleep 1")
        A("s_sub_u32 s79, s79, 1")
        A(f"s_cbranch_scc0 {l}")
        A("s_branch L_DONE")
        A.label(d)
    def lds_set(addr, vt=5, va=6):
        A(f"s_waitcnt lgkmcnt(0)\n v_mov_b32 v{va}, {addr}\n v_mov_b32 v{vt}, 1\n ds_write_b32 v{va}, v{vt}")
    def lds_count(addr, vt=5, va=6):
        A(f"""s_waitcnt lgkmcnt(0)
          v_mov_b32 v{va}, {addr}
          v_mov_b32 v{vt}, 1
          s_mov_b64 exec, 1
          ds_add_rtn_u32 v{vt}, v{va}, v{vt}
          s_waitcnt lgkmcnt(0)
          v_readfirstlane_b32 s44, v{vt}
          s_mov_b64 exec, -1""")
    def mma8(tile, af, acc, first, sets=(TMP, TMP+4)):
        def P(dd):
            t = sets[dd & 1]
            sel = S_PLO if (dd & 1) == 0 else S_PHI
            for p in range(4):
                A(f"v_perm_b32 v{t+p}, v{tile+(2*p+1)*4+(dd>>1)}, v{tile+(2*p)*4+(dd>>1)}, s{sel}")
        def M(dd):
            t = sets[dd & 1]
            c = "0" if first else vr(acc+dd*4)
            A(f"v_mfma_f32_16x16x32_bf16 {vr(acc+dd*4)}, {vr(af)}, {vr(t)}, {c}")
        P(0); P(1)
        for dd in range(8):
            M(dd)
            if dd+2 < 8: P(dd+2)
    def publish64(acc, voff, base_s):
        for k in range(4):
            A(f"v_add_f32_dpp v{DD}, v{acc+(2*k)*4+1}, v{acc+(2*k)*4} row_ror:8 row_mask:{1<<k:#x} bank_mask:0xf")
            A(f"v_add_f32_dpp v{DD+2}, v{acc+(2*k+1)*4+1}, v{acc+(2*k+1)*4} row_ror:8 row_mask:{1<<k:#x} bank_mask:0xf")
        A(f"v_mov_b32 v{DD+3}, v{DD+1}")
        A("s_mov_b32 s46, 0x00ff00ff\n s_mov_b32 s47, 0x00ff00ff\n s_mov_b64 exec, s[46:47]")
        A(f"global_store_dwordx4 v{voff}, {vr(DD)}, {sp(base_s)} sc1")
        A("s_mov_b64 exec, -1")
    def flag_store(off_s, tagv, va=5):
        A(f"v_mov_b32 v{va}, s{off_s}\n s_mov_b64 exec, 1\n global_store_dword v{va}, v{tagv}, {sp(S_WS)} sc1\n s_mov_b64 exec, -1")
    def flag_poll(off_s, n):
        l = L("FP"); ok = L("FPOK")
        A(f"s_add_u32 s64, s{S_WS}, s{off_s}\n s_addc_u32 s65, s{S_WS+1}, 0")
        A.label(l)
        if n == 16:
            A("s_load_dwordx16 s[48:63], s[64:65], 0 glc\n s_waitcnt lgkmcnt(0)")
            for i in range(8):
                A(f"s_xor_b64 s[{48+2*i}:{49+2*i}], s[{48+2*i}:{49+2*i}], s[66:67]")
            for i in range(1, 8):
                A(f"s_or_b64 s[48:49], s[48:49], s[{48+2*i}:{49+2*i}]")
        else:
            A("s_load_dwordx4 s[48:51], s[64:65], 0 glc\n s_waitcnt lgkmcnt(0)")
            A("s_xor_b64 s[48:49], s[48:49], s[66:67]\n s_xor_b32 s50, s50, s66\n s_or_b32 s48, s48, s50\n s_or_b64 s[48:49], s[48:49], 0".replace("s_or_b64 s[48:49], s[48:49], 0", "s_or_b32 s48, s48, s49"))
        if n == 16:
            A(f"s_cbranch_scc0 {ok}")
        else:
            A(f"s_cbranch_scc0 {ok}")
        A("s_sub_u32 s79, s79, 1")
        A(f"s_cbranch_scc0 {l}")
        A("s_branch L_DONE")
        A.label(ok)
    def rowred(op, v):
        for r in (8, 4, 2, 1):
            A(f"v_{op}_f32_dpp v{v}, v{v}, v{v} row_ror:{r} row_mask:0xf bank_mask:0xf")
    def crossrow(op, v, t):
        A(f"v_mov_b32 v{t}, v{v}\n v_permlane16_swap_b32 v{v}, v{t}\n v_{op}_f32 v{v}, v{v}, v{t}")
        A(f"v_mov_b32 v{t}, v{v}\n v_permlane32_swap_b32 v{v}, v{t}\n v_{op}_f32 v{v}, v{v}, v{t}")
    def rne(dst, src):
        A(f"v_cvt_pk_bf16_f32 v{dst}, v{src}, v{src}\n v_lshlrev_b32 v{dst}, 16, v{dst}")
    def silu(v, t):
        A(f"""v_mul_f32 v{t}, {f2u(-LOG2E):#x}, v{v}
          v_exp_f32 v{t}, v{t}
          v_add_f32 v{t}, 1.0, v{t}
          v_rcp_f32 v{t}, v{t}
          v_mul_f32 v{v}, v{v}, v{t}""")
    def tagcheck(tagv, regs, acc, t1, t2, retry):
        first = True
        for i in range(0, len(regs), 2):
            A(f"v_xor_b32 v{t1}, v{tagv}, v{regs[i]}")
            if i+1 < len(regs):
                A(f"v_xor_b32 v{t2}, v{tagv}, v{regs[i+1]}")
                A(f"v_or_b32 v{acc}, v{t1}, v{t2}" if first else f"v_or3_b32 v{acc}, v{acc}, v{t1}, v{t2}")
            else:
                A(f"v_mov_b32 v{acc}, v{t1}" if first else f"v_or_b32 v{acc}, v{acc}, v{t1}")
            first = False
        ok = L("OK")
        A(f"v_cmp_ne_u32 vcc, 0, v{acc}")
        A(f"s_cbranch_vccz {ok}")
        A("s_sub_u32 s79, s79, 1")
        A(f"s_cbranch_scc0 {retry}")
        A("s_branch L_DONE")
        A.label(ok)
    def row_of_lane(dst):
        A(f"v_lshlrev_b32 v{dst}, 5, v3\n v_lshl_add_u32 v{dst}, v1, 3, v{dst}")
    def arow_of_lane(dst):
        A(f"v_and_b32 v{dst}, 1, v0\n v_lshlrev_b32 v{dst}, 5, v{dst}\n v_lshl_add_u32 v{dst}, v1, 3, v{dst}")
    def tile1152(rowbase_s, line_s, wbase, outbase, rb_s, flag, vec):
        row_of_lane(5)
        A(f"""s_lshl_b32 s44, s{rb_s}, 6
          v_add_u32 v6, s44, v5
          v_mul_u32_u24 v6, 1152, v6
          v_lshl_add_u32 v6, v4, 4, v6
          s_lshl_b32 s44, s{line_s}, 7
          v_add_u32 v6, s44, v6
          v_add_u32 v7, 4608, v6""")
        for i in range(8):
            throttle2(i)
            A(f"global_load_dwordx4 {vr(TILE+4*i)}, v{6+(i>>2)}, {sp(wbase)} offset:{(i&3)*1152}{NT}")
        A(f"""s_mul_i32 s54, s{rb_s}, 4608
          s_lshl_b32 s44, s{line_s}, 9
          s_add_u32 s54, s54, s44
          s_add_u32 s54, s54, {outbase}
          s_mov_b32 s52, {flag}
          s_mov_b32 s53, {vec}""")

    stamp(0)
    if opts.get("padto"): A("s_memrealtime s[96:97]")
    A(f"""s_cmp_ge_u32 s2, 256
      s_cbranch_scc1 L_END
      s_load_dwordx16 s[8:23], s[0:1], 0
      s_load_dwordx8 s[24:31], s[0:1], 64
      v_lshrrev_b32 v1, 6, v0
      v_and_b32 v0, 63, v0
      v_readfirstlane_b32 s{S_W}, v1
      s_and_b32 s{S_XC}, s2, 7
      s_lshr_b32 s{S_KK}, s2, 3
      s_lshr_b32 s{S_H}, s2, 7
      s_lshl_b32 s{S_H}, s{S_H}, 3
      s_add_u32 s{S_H}, s{S_H}, s{S_XC}
      s_and_b32 s{S_S}, s{S_KK}, 15
      s_mov_b32 s79, 100000
      s_mov_b32 s{S_PLO}, 0x05040100
      s_mov_b32 s{S_PHI}, 0x07060302
      v_mov_b32 v5, 0
      v_lshlrev_b32 v6, 2, v0
      ds_write_b32 v6, v5
      v_lshrrev_b32 v1, 4, v0
      v_and_b32 v2, 15, v0
      v_bfe_u32 v3, v0, 3, 1
      v_and_b32 v4, 7, v0
      s_mul_i32 s44, s{S_KK}, 11
      s_lshr_b32 s44, s44, 5
      s_mul_i32 s45, s44, 3
      s_sub_u32 s{S_RT}, s{S_KK}, s45
      s_mul_i32 s{S_CB}, s{S_XC}, 9
      s_add_u32 s{S_CB}, s{S_CB}, s44
      s_mul_i32 s44, s{S_KK}, 57
      s_lshr_b32 s44, s44, 9
      s_mul_i32 s45, s44, 9
      s_sub_u32 s{S_LINE}, s{S_KK}, s45
      s_add_u32 s44, s44, 5
      s_sub_u32 s45, s{S_KK}, 27
      s_cmp_lt_u32 s{S_KK}, 27
      s_cselect_b32 s44, s44, s45
      s_lshl_b32 s45, s{S_XC}, 2
      s_add_u32 s45, s45, s44
      s_add_u32 s46, s45, 28
      s_cmp_lt_u32 s44, 4
      s_cselect_b32 s{S_RBO}, s45, s46
      s_waitcnt lgkmcnt(0)
      s_cmp_lt_u32 s{S_W}, 2
      s_cbranch_scc1 L_W01
      s_barrier""")
    stamp(1)
    A(f"""s_cmp_ge_u32 s{S_W}, 8
      s_cbranch_scc1 L_ATT
      s_branch L_GV""")
    A.label("L_W01")
    A(f"""s_setprio 3
      s_cmp_eq_u32 s{S_W}, 1
      s_cbranch_scc1 L_W1""")

    A(f"""s_lshr_b32 s44, s{S_S}, 2
      s_mul_i32 s48, s44, 144
      s_lshl_b32 s45, s48, 13
      s_lshl_b32 s46, s{S_H}, 9
      s_add_u32 s45, s45, s46
      s_and_b32 s46, s{S_S}, 3
      s_lshl_b32 s46, s46, 7
      s_add_u32 s45, s45, s46""")
    row_of_lane(5)
    A(f"""v_lshlrev_b32 v6, 13, v5
      v_lshl_add_u32 v6, v4, 4, v6
      v_add_u32 v6, s45, v6""")
    for i in range(8):
        A(f"global_load_dwordx4 {vr(16+4*i)}, v6, {sp(S_WQ)}{NT}")
        A(f"v_add_u32 v6, {8192 if i < 7 else 57*8192}, v6")
    for i in range(8):
        A(f"global_load_dwordx4 {vr(48+4*i)}, v6, {sp(S_WQ)}{NT}")
        if i < 7: A("v_add_u32 v6, 8192, v6")
    A(f"""v_lshlrev_b32 v7, 3, v3
      v_lshl_add_u32 v7, v1, 1, v7
      v_add_u32 v8, 128, v7
      v_lshlrev_b32 v8, 13, v8
      v_lshl_add_u32 v8, v4, 4, v8
      v_add_u32 v8, s45, v8""")
    A(f"global_load_dwordx4 {vr(80)}, v8, {sp(S_WQ)}{NT}")
    A("v_add_u32 v8, 8192, v8")
    A(f"global_load_dwordx4 {vr(84)}, v8, {sp(S_WQ)}{NT}")
    A("s_barrier")
    stamp(1)
    arow_of_lane(10)
    A(f"""v_add_u32 v10, s48, v10
      v_lshlrev_b32 v10, 1, v10
      v_and_b32 v11, 1, v0
      v_lshlrev_b32 v11, 3, v11
      v_lshl_add_u32 v11, v1, 1, v11
      v_add_u32 v11, s48, v11
      v_lshlrev_b32 v11, 1, v11
      s_lshl_b32 s45, s{S_H}, 4
      s_add_u32 s45, s45, s{S_S}
      s_lshl_b32 s45, s45, 9
      s_add_u32 s45, s45, {WS_QP}
      v_lshlrev_b32 v9, 7, v1
      v_lshl_add_u32 v9, v4, 4, v9
      v_add_u32 v9, s45, v9""")
    lds_wait(F_XN)
    stamp(2)
    A(f"""ds_read_b128 {vr(120)}, v10 offset:{L_XN}
      ds_read_b128 {vr(12)}, v10 offset:{L_XN+128}
      ds_read_b32 v10, v11 offset:{L_XN+256}
      v_mov_b32 v11, 0
      s_waitcnt vmcnt(10) lgkmcnt(0)""")
    W0ACC = 88
    stamp(4)
    mma8(16, 120, W0ACC, True, sets=(124, 4))
    A("s_waitcnt vmcnt(2)")
    stamp(5)
    mma8(48, 12, W0ACC, False, sets=(124, 4))
    A(f"""v_mov_b32 v5, {L_TAG}
      ds_read_b32 v{DD+1}, v5
      v_mov_b32 v17, 0
      v_mov_b32 v19, 0
      s_waitcnt vmcnt(0)""")
    for dd in range(8):
        t = 16 + (dd & 1) * 2
        sel = S_PLO if (dd & 1) == 0 else S_PHI
        A(f"v_perm_b32 v{t}, v{84+(dd>>1)}, v{80+(dd>>1)}, s{sel}")
        A(f"v_mfma_f32_16x16x16_bf16 {vr(W0ACC+dd*4)}, v[10:11], v[{t}:{t+1}], {vr(W0ACC+dd*4)}")
    A("s_waitcnt lgkmcnt(0)")
    publish64(W0ACC, 9, S_WS)
    A(f"s_lshl_b32 s44, s{S_H}, 7\n s_lshl_b32 s45, s{S_S}, 2\n s_add_u32 s44, s44, s45\n s_add_u32 s44, s44, {WS_FLQ}")
    flag_store(44, DD+1)
    stamp(3)
    A("s_branch L_DONE")

    A.label("L_W1")
    A(f"""v_lshlrev_b32 v5, 4, v0
      v_mov_b32 v20, 0
      v_mov_b32 v21, 0
      v_mov_b32 v22, 0
      v_mov_b32 v23, 0
      global_load_dwordx4 {vr(16)}, v5, {sp(S_X)}
      s_mov_b64 exec, 0xff
      global_load_dwordx4 {vr(20)}, v5, {sp(S_X)} offset:1024
      s_mov_b64 exec, -1
      s_load_dword s48, {sp(S_WS)}, {WS_EPOCH}
      s_barrier
      s_waitcnt vmcnt(0)""")
    stamp(1)
    for i in range(8):
        A(f"v_lshlrev_b32 v{24+2*i}, 16, v{16+i}\n v_and_b32 v{25+2*i}, 0xffff0000, v{16+i}")
    A("v_add_f32 v40, v24, v25")
    for i in range(26, 40): A(f"v_add_f32 v40, v40, v{i}")
    rowred("add", 40); crossrow("add", 40, 41)
    A(f"v_mul_f32 v40, {f2u(1.0/576):#x}, v40")
    A("v_sub_f32 v42, v24, v40\n v_mul_f32 v41, v42, v42")
    for i in range(25, 32):
        A(f"v_sub_f32 v42, v{i}, v40\n v_fmac_f32 v41, v42, v42")
    A("s_mov_b64 exec, 0xff")
    for i in range(32, 40):
        A(f"v_sub_f32 v42, v{i}, v40\n v_fmac_f32 v41, v42, v42")
    A("s_mov_b64 exec, -1")
    rowred("add", 41); crossrow("add", 41, 42)
    A(f"v_mul_f32 v41, {f2u(1.0/576):#x}, v41")
    rne(40, 40); rne(41, 41)
    A(f"v_add_f32 v41, {f2u(1e-5):#x}, v41")
    rne(41, 41)
    A("v_sqrt_f32 v41, v41")
    rne(41, 41)
    A("v_rcp_f32 v41, v41")
    for i in range(8):
        a, b = 24+2*i, 25+2*i
        A(f"""v_sub_f32 v{a}, v{a}, v40
          v_sub_f32 v{b}, v{b}, v40
          v_cvt_pk_bf16_f32 v{a}, v{a}, v{b}
          v_and_b32 v{b}, 0xffff0000, v{a}
          v_lshlrev_b32 v{a}, 16, v{a}
          v_mul_f32 v{a}, v{a}, v41
          v_mul_f32 v{b}, v{b}, v41
          v_cvt_pk_bf16_f32 v{16+i}, v{a}, v{b}""")
    A(f"""ds_write_b128 v5, {vr(16)} offset:{L_XN}
      s_mov_b64 exec, 0xff
      ds_write_b128 v5, {vr(20)} offset:{L_XN+1024}
      s_mov_b64 exec, -1
      s_waitcnt lgkmcnt(0)
      s_add_u32 s48, s48, {PHI}
      v_mov_b32 v14, s48
      v_mov_b32 v6, {L_TAG}
      ds_write_b32 v6, v14""")
    lds_set(F_XN)
    stamp(2)
    A(f"""s_lshl_b32 s45, s{S_H}, 13
      s_add_u32 s45, s45, {WS_QP}
      v_lshlrev_b32 v7, 4, v0
      v_add_u32 v7, s45, v7
      v_add_u32 v8, 4096, v7""")
    A(f"s_mov_b32 s66, s48\n s_mov_b32 s67, s48\n s_lshl_b32 s44, s{S_H}, 7\n s_add_u32 s44, s44, {WS_FLQ}")
    flag_poll(44, 16)
    if stamps: A("s_mov_b32 s98, 0\n s_mov_b32 s99, 0")
    stamp(1)
    A.label("L_QSW")
    if stamps: A("s_add_u32 s98, s98, 0x10000")
    for r in range(4):
        for hh in range(2):
            off = r*2048 + hh*1024
            A(f"global_load_dwordx4 {vr(16+(r*2+hh)*4)}, v{7 if off < 4096 else 8}, {sp(S_WS)} offset:{off & 4095} sc1")
    A("s_waitcnt vmcnt(0)")
    tagcheck(14, [16+4*i+1 for i in range(8)] + [16+4*i+3 for i in range(8)], 48, 49, 50, "L_QSW")
    for hh in range(2):
        for e in (0, 2):
            d = 52+hh*2+e//2
            A(f"v_add_f32 v{d}, v{16+hh*4+e}, v{16+(2+hh)*4+e}")
            A(f"v_add_f32 v{d}, v{d}, v{16+(4+hh)*4+e}")
            A(f"v_add_f32 v{d}, v{d}, v{16+(6+hh)*4+e}")
    A("v_cvt_pk_bf16_f32 v52, v52, v53\n v_cvt_pk_bf16_f32 v54, v54, v55")
    A(f"""v_lshrrev_b32 v9, 5, v0
      v_lshlrev_b32 v9, 7, v9
      v_lshl_add_u32 v9, v4, 4, v9
      v_bfe_u32 v10, v0, 3, 2
      v_lshl_add_u32 v9, v10, 2, v9
      ds_write_b32 v9, v52 offset:{L_Q}
      ds_write_b32 v9, v54 offset:{L_Q+256}""")
    lds_set(F_Q)
    stamp(3)
    A(f"""s_lshl_b32 s45, s{S_RBO}, 13
      s_add_u32 s45, s45, {WS_OP}
      v_lshlrev_b32 v7, 3, v0
      v_add_u32 v7, s45, v7
      v_add_u32 v8, 4096, v7
      s_lshr_b32 s45, s{S_RBO}, 1
      s_lshl_b32 s45, s45, 8
      s_add_u32 s45, s45, {WS_OS}
      v_lshlrev_b32 v9, 4, v2
      v_add_u32 v9, s45, v9""")
    A(f"s_lshr_b32 s44, s{S_RBO}, 2\n s_lshl_b32 s44, s44, 7\n s_add_u32 s44, s44, {WS_FLO}")
    flag_poll(44, 16)
    stamp(8)
    A.label("L_OSW")
    if stamps: A("s_add_u32 s98, s98, 0x100")
    A(f"global_load_dwordx4 {vr(48)}, v9, {sp(S_WS)} sc1")
    for s in range(16):
        off = s*512
        A(f"global_load_dwordx2 v[{16+2*s}:{17+2*s}], v{7 if off < 4096 else 8}, {sp(S_WS)} offset:{off & 4095} sc1")
    A("s_waitcnt vmcnt(0)")
    tagcheck(14, [49, 51] + [17+2*s for s in range(16)], 52, 53, 54, "L_OSW")
    stamp(4)
    A("v_mov_b32 v52, v48")
    rowred("max", 52)
    A("v_sub_f32 v52, v48, v52\n v_exp_f32 v52, v52\n v_mul_f32 v53, v52, v50")
    rowred("add", 53)
    A("v_rcp_f32 v53, v53\n v_mul_f32 v52, v52, v53")
    for s in range(16):
        A(f"v_readlane_b32 s{48+s}, v52, {s}")
    A("v_mul_f32 v55, s48, v16")
    for s in range(1, 16):
        A(f"v_fmac_f32 v55, s{48+s}, v{16+2*s}")
    A(f"""v_cvt_pk_bf16_f32 v55, v55, v55
      v_lshrrev_b32 v9, 3, v0
      v_lshl_add_u32 v9, v4, 3, v9
      v_lshlrev_b32 v9, 1, v9
      ds_write_b16 v9, v55 offset:{L_O}""")
    lds_set(F_O)
    stamp(5)
    A(f"""s_cmp_ge_u32 s{S_KK}, 27
      s_cbranch_scc1 L_DONE
      s_mul_i32 s45, s{S_CB}, 3072
      s_add_u32 s45, s45, {WS_HP}
      v_lshlrev_b32 v7, 4, v0
      v_add_u32 v7, s45, v7""")
    A(f"s_lshl_b32 s44, s{S_CB}, 7\n s_add_u32 s44, s44, {WS_FLH}")
    flag_poll(44, 3)
    A.label("L_HSW")
    if stamps: A("s_add_u32 s98, s98, 0x1")
    for r in range(3):
        A(f"global_load_dwordx4 {vr(16+4*r)}, v7, {sp(S_WS)} offset:{r*1024} sc1")
    A("s_waitcnt vmcnt(0)")
    tagcheck(14, [17, 19, 21, 23, 25, 27], 52, 53, 54, "L_HSW")
    stamp(6)
    A("""v_add_f32 v16, v16, v20
      v_add_f32 v18, v18, v22
      v_add_f32 v16, v16, v24
      v_add_f32 v18, v18, v26""")
    rne(16, 16); rne(18, 18)
    silu(16, 20)
    rne(16, 16)
    A(f"""v_mul_f32 v16, v16, v18
      v_cvt_pk_bf16_f32 v16, v16, v16
      v_lshlrev_b32 v9, 1, v0
      ds_write_b16 v9, v16 offset:{L_H}""")
    lds_set(F_H)
    stamp(7)
    A("s_branch L_DONE")

    A.label("L_GV")
    A(f"""s_sub_u32 s50, s{S_W}, 2
      s_cmp_ge_u32 s{S_KK}, 27
      s_cbranch_scc1 L_GVB""")
    row_of_lane(5)
    A(f"""s_lshr_b32 s44, s50, 1
      s_mul_i32 s45, s{S_RT}, 3
      s_add_u32 s45, s45, s44
      s_lshl_b32 s51, s45, 6
      v_add_u32 v5, s51, v5
      s_mov_b32 s44, 9216
      v_mul_lo_u32 v9, v5, s44
      v_lshl_add_u32 v9, v4, 4, v9
      s_lshl_b32 s44, s{S_CB}, 7
      v_add_u32 v9, s44, v9
      s_bitcmp1_b32 s50, 0
      s_cselect_b32 s48, s{S_WU}, s{S_WG}
      s_cselect_b32 s49, s{S_WU+1}, s{S_WG+1}""")
    arow_of_lane(10)
    A("v_add_u32 v10, s51, v10\n v_lshlrev_b32 v10, 1, v10")
    lds_wait(C_VISS, 8, vtmp=7, vaddr=8)
    stamp(2)
    for i in range(8):
        throttle2(i)
        A(f"global_load_dwordx4 {vr(TILE+4*i)}, v9, s[48:49]{NT}")
        if i < 7: A("v_add_u32 v9, 9216, v9")
    lds_wait(F_XN, vtmp=7, vaddr=8)
    A(f"ds_read_b128 {vr(AF)}, v10 offset:{L_XN}\n s_waitcnt vmcnt(0) lgkmcnt(0)")
    A("s_setprio 3")
    stamp(3)
    mma8(TILE, AF, ACC, True)
    for dd in range(8):
        A(f"v_add_f32_dpp v{TILE+dd}, v{ACC+dd*4+1}, v{ACC+dd*4} row_ror:8 row_mask:0xf bank_mask:0xf")
    A(f"""s_lshl_b32 s44, s50, 8
      v_lshlrev_b32 v6, 5, v4
      v_add_u32 v6, s44, v6
      s_mov_b64 exec, 0xff
      ds_write_b128 v6, {vr(TILE)} offset:{L_GU}
      ds_write_b128 v6, {vr(TILE+4)} offset:{L_GU+16}
      s_mov_b64 exec, -1""")
    lds_count(C_GU)
    A(f"""s_cmp_lg_u32 s44, 5
      s_cbranch_scc1 L_DONE
      v_lshlrev_b32 v6, 2, v0""")
    for v in range(6):
        A(f"ds_read_b32 v{16+v}, v6 offset:{L_GU+v*256}")
    A(f"""v_mov_b32 v7, {L_TAG}
      ds_read_b32 v25, v7
      s_mul_i32 s44, s{S_CB}, 3
      s_add_u32 s44, s44, s{S_RT}
      s_lshl_b32 s44, s44, 10
      s_add_u32 s44, s44, {WS_HP}
      v_lshlrev_b32 v6, 4, v0
      v_add_u32 v6, s44, v6
      s_waitcnt lgkmcnt(0)
      v_add_f32 v24, v16, v18
      v_add_f32 v26, v17, v19
      v_add_f32 v24, v24, v20
      v_add_f32 v26, v26, v21
      v_mov_b32 v27, v25
      global_store_dwordx4 v6, {vr(24)}, {sp(S_WS)} sc1""")
    A(f"s_lshl_b32 s44, s{S_CB}, 7\n s_lshl_b32 s45, s{S_RT}, 2\n s_add_u32 s44, s44, s45\n s_add_u32 s44, s44, {WS_FLH}")
    flag_store(44, 25)
    stamp(4)
    A("s_branch L_DONE")
    A.label("L_GVB")
    lds_wait(C_VISS, 8, vtmp=7, vaddr=8)
    stamp(2)
    tile1152(None, 50, S_WO, WS_PO, S_RBO, F_O, L_O)
    A("s_mov_b32 s55, 0\n s_branch L_TASK2")

    A.label("L_ATT")
    A(f"""s_setprio 1
      s_sub_u32 s50, s{S_W}, 8
      s_lshl_b32 s44, s{S_H}, 24
      s_lshl_b32 s45, s{S_S}, 8
      s_lshl_b32 s46, s50, 5
      s_add_u32 s45, s45, s46
      s_add_u32 s45, s45, 61440
      s_lshl_b32 s45, s45, 8
      s_add_u32 s44, s44, s45
      s_add_u32 s56, s{S_K}, s44
      s_addc_u32 s57, s{S_K+1}, 0
      s_add_u32 s58, s{S_V}, s44
      s_addc_u32 s59, s{S_V+1}, 0
      v_lshlrev_b32 v5, 8, v2
      v_lshl_add_u32 v5, v1, 4, v5
      v_add_u32 v6, 4096, v5
      v_lshlrev_b32 v7, 10, v1
      v_lshl_add_u32 v7, v2, 4, v7
      v_add_u32 v8, 4096, v7""")
    for t in range(2):
        for i in range(4):
            throttle(t*4+i)
            A(f"global_load_dwordx4 {vr(16+(t*4+i)*4)}, v{5+t}, s[56:57] offset:{i*64}{NT}")
    for i in range(8):
        throttle(8+i)
        A(f"global_load_dwordx4 {vr(48+i*4)}, v{7+(i>>2)}, s[58:59] offset:{(i&3)*256}{NT}")
    lds_count(C_VISS)
    stamp(2)
    lds_wait(F_Q)
    A("s_setprio 3")
    stamp(3)
    A(f"""v_and_b32 v5, 1, v0
      v_lshlrev_b32 v5, 8, v5
      v_lshl_add_u32 v5, v1, 4, v5""")
    for i in range(4):
        A(f"ds_read_b128 {vr(80+4*i)}, v5 offset:{L_Q+64*i}")
    A("s_waitcnt vmcnt(8) lgkmcnt(0)")
    for i in range(4):
        for t in range(2):
            c = "0" if i == 0 else vr(112+4*t)
            A(f"v_mfma_f32_16x16x32_bf16 {vr(112+4*t)}, {vr(16+(t*4+i)*4)}, {vr(80+4*i)}, {c}")
    A("""v_max3_f32 v9, v112, v113, v114
      v_max3_f32 v9, v9, v115, v116
      v_max3_f32 v9, v9, v117, v118
      v_max_f32 v9, v9, v119""")
    crossrow("max", 9, 10)
    A(f"s_mov_b32 s44, {f2u(CSC):#x}\n v_mul_f32 v9, s44, v9")
    for r in range(8):
        A(f"v_fma_f32 v{112+r}, v{112+r}, s44, -v9\n v_exp_f32 v{112+r}, v{112+r}")
    A("v_add_f32 v10, v112, v113")
    for r in range(2, 8): A(f"v_add_f32 v10, v10, v{112+r}")
    for p in range(4):
        A(f"v_cvt_pk_bf16_f32 v{120+p}, v{112+2*p}, v{113+2*p}")
    crossrow("add", 10, 11)
    A("v_mov_b32 v12, v9\n v_mov_b32 v13, v10")
    stamp(4)
    A("s_waitcnt vmcnt(0)")
    A.label("L_PV")
    stamp(5)
    mma8(48, 120, ACC, True)
    A(f"""s_lshl_b32 s44, s50, 10
      s_add_u32 s44, s44, {L_ATT}
      v_bfe_u32 v5, v0, 1, 2
      v_lshlrev_b32 v5, 4, v5
      v_lshl_add_u32 v5, v3, 3, v5
      v_and_b32 v6, 1, v0
      v_lshl_add_u32 v5, v6, 2, v5
      v_add_u32 v5, s44, v5
      s_lshl_b32 s44, s50, 3
      v_lshlrev_b32 v6, 6, v6
      v_add_u32 v6, s44, v6
      s_mov_b64 exec, 0xffff""")
    for dd in range(8):
        A(f"ds_write2_b32 v5, v{ACC+dd*4}, v{ACC+dd*4+1} offset0:{dd*16} offset1:{128+dd*16}")
    A(f"""s_mov_b64 exec, 3
      ds_write_b64 v6, v[12:13] offset:{L_ST}
      s_mov_b64 exec, -1""")
    lds_count(C_ATT)
    A(f"""s_cmp_lg_u32 s44, 7
      s_cbranch_scc1 L_ATC
      v_lshlrev_b32 v5, 4, v0
      v_lshrrev_b32 v6, 5, v0
      v_lshlrev_b32 v7, 6, v6""")
    for w in range(8):
        A(f"ds_read_b128 {vr(48+4*w)}, v5 offset:{L_ATT+w*1024}")
    for i in range(4):
        A(f"ds_read_b128 {vr(80+4*i)}, v7 offset:{L_ST+16*i}")
    A(f"""v_mov_b32 v8, {L_TAG}
      ds_read_b32 v101, v8
      s_lshl_b32 s44, s{S_H}, 2
      s_lshl_b32 s44, s44, 13
      s_lshl_b32 s45, s{S_S}, 9
      s_add_u32 s44, s44, s45
      s_add_u32 s44, s44, {WS_OP}
      v_lshlrev_b32 v9, 14, v6
      v_and_b32 v10, 31, v0
      v_lshl_add_u32 v9, v10, 4, v9
      v_add_u32 v9, s44, v9
      v_add_u32 v10, 8192, v9
      s_lshl_b32 s44, s{S_H}, 9
      s_lshl_b32 s45, s{S_S}, 4
      s_add_u32 s44, s44, s45
      s_add_u32 s44, s44, {WS_OS}
      v_lshlrev_b32 v11, 8, v6
      v_add_u32 v11, s44, v11
      s_waitcnt lgkmcnt(0)
      v_max3_f32 v96, v80, v82, v84
      v_max3_f32 v96, v96, v86, v88
      v_max3_f32 v96, v96, v90, v92
      v_max_f32 v96, v96, v94""")
    for w in range(8):
        A(f"v_sub_f32 v{80+2*w}, v{80+2*w}, v96\n v_exp_f32 v{80+2*w}, v{80+2*w}")
    A("v_mul_f32 v98, v80, v81")
    for w in range(1, 8): A(f"v_fmac_f32 v98, v{80+2*w}, v{81+2*w}")
    for e in range(4):
        A(f"v_mul_f32 v{100+2*e}, v80, v{48+e}")
    for w in range(1, 8):
        for e in range(4):
            A(f"v_fmac_f32 v{100+2*e}, v{80+2*w}, v{48+4*w+e}")
    A(f"""v_mov_b32 v103, v101
      v_mov_b32 v105, v101
      v_mov_b32 v107, v101
      v_mov_b32 v97, v101
      v_mov_b32 v99, v101
      global_store_dwordx4 v9, {vr(100)}, {sp(S_WS)} sc1
      global_store_dwordx4 v10, {vr(104)}, {sp(S_WS)} sc1
      s_mov_b32 s46, 1
      s_mov_b32 s47, 1
      s_mov_b64 exec, s[46:47]
      global_store_dwordx4 v11, {vr(96)}, {sp(S_WS)} sc1
      s_mov_b64 exec, -1""")
    A(f"s_lshl_b32 s44, s{S_H}, 7\n s_lshl_b32 s45, s{S_S}, 2\n s_add_u32 s44, s44, s45\n s_add_u32 s44, s44, {WS_FLO}")
    flag_store(44, 101)
    A.label("L_ATC")
    A("s_setprio 0")
    stamp(6)
    A(f"""s_mov_b32 s55, 0
      s_cmp_ge_u32 s{S_KK}, 27
      s_cbranch_scc1 L_AT2B
      s_cmp_gt_u32 s50, 3
      s_cbranch_scc1 L_FINCHK
      s_mov_b32 s51, s{S_LINE}
      s_cmp_eq_u32 s50, 3
      s_cbranch_scc1 L_AT2WO
      s_mul_i32 s51, s{S_RT}, 3
      s_add_u32 s51, s51, s50""")
    tile1152(None, 51, S_WD, WS_PD, S_CB, F_H, L_H)
    A("s_mov_b32 s55, 1\n s_branch L_TASK2")
    A.label("L_AT2B")
    A(f"""s_cmp_gt_u32 s50, 2
      s_cbranch_scc1 L_FINCHK
      s_add_u32 s51, s50, 6""")
    A.label("L_AT2WO")
    tile1152(None, 51, S_WO, WS_PO, S_RBO, F_O, L_O)
    A("s_mov_b32 s55, 1")

    A.label("L_TASK2")
    arow_of_lane(5)
    A(f"""v_lshlrev_b32 v10, 1, v5
      v_add_u32 v10, s53, v10
      v_lshlrev_b32 v9, 7, v1
      v_lshl_add_u32 v9, v4, 4, v9
      v_add_u32 v9, s54, v9
      v_mov_b32 v6, s52""")
    lw = L("W"); ld = L("WD")
    A.label(lw)
    A(f"""ds_read_b32 v5, v6
      s_waitcnt lgkmcnt(0)
      v_readfirstlane_b32 s44, v5
      s_cmp_lg_u32 s44, 0
      s_cbranch_scc1 {ld}
      s_sleep 1
      s_sub_u32 s79, s79, 1
      s_cbranch_scc0 {lw}
      s_branch L_DONE""")
    A.label(ld)
    A("s_setprio 3")
    stamp(7)
    A(f"""ds_read_b128 {vr(AF)}, v10
      v_mov_b32 v5, {L_TAG}
      ds_read_b32 v{DD+1}, v5
      s_waitcnt vmcnt(0) lgkmcnt(0)""")
    mma8(TILE, AF, ACC, True)
    publish64(ACC, 9, S_WS)
    stamp(8)
    A("s_cmp_eq_u32 s55, 0\n s_cbranch_scc1 L_DONE")

    A.label("L_FINCHK")
    A(f"""s_cmp_lt_u32 s2, 216
      s_cbranch_scc1 L_DONE""")
    A(f"""s_sub_u32 s60, s{S_KK}, 27
      s_lshl_b32 s60, s60, 3
      s_add_u32 s60, s60, s{S_XC}
      s_cmp_ge_u32 s60, 36
      s_cbranch_scc1 L_DONE
      s_lshl_b32 s61, s60, 7
      v_lshrrev_b32 v5, 3, v0
      s_lshl_b32 s44, s50, 3
      v_add_u32 v6, s44, v5
      v_mul_u32_u24 v6, 4608, v6
      v_lshl_add_u32 v6, v4, 4, v6
      v_add_u32 v6, s61, v6
      v_add_u32 v6, {WS_PO}, v6
      s_mul_i32 s44, s50, 9
      v_add_u32 v7, s44, v5
      v_mul_u32_u24 v7, 4608, v7
      v_lshl_add_u32 v7, v4, 4, v7
      v_add_u32 v7, s61, v7
      v_add_u32 v7, {WS_PD}, v7
      s_add_u32 s44, s44, 8
      s_mul_i32 s44, s44, 4608
      s_add_u32 s44, s44, s61
      s_add_u32 s44, s44, {WS_PD}
      v_lshlrev_b32 v8, 4, v4
      v_add_u32 v8, s44, v8
      v_mov_b32 v9, {L_TAG}
      ds_read_b32 v14, v9
      s_lshr_b32 s62, s60, 2
      s_lshl_b32 s62, s62, 7
      s_and_b32 s44, s60, 3
      s_lshl_b32 s44, s44, 2
      s_add_u32 s62, s62, s44
      v_lshlrev_b32 v10, 4, v4
      v_add_u32 v10, s62, v10
      global_load_dword v15, v10, {sp(S_X)}
      s_waitcnt lgkmcnt(0)
      v_mov_b32 v24, 0
      v_mov_b32 v25, v14
      v_mov_b32 v26, 0
      v_mov_b32 v27, v14""")
    A.label("L_FSW")
    A(f"""global_load_dwordx4 {vr(16)}, v6, {sp(S_WS)} sc1
      global_load_dwordx4 {vr(20)}, v7, {sp(S_WS)} sc1
      s_mov_b64 exec, 0xff
      global_load_dwordx4 {vr(24)}, v8, {sp(S_WS)} sc1
      s_mov_b64 exec, -1
      s_waitcnt vmcnt(0)""")
    tagcheck(14, [17, 19, 21, 23, 25, 27], 28, 29, 30, "L_FSW")
    stamp(9)
    A(f"""v_add_f32 v20, v20, v24
      v_add_f32 v22, v22, v26
      v_lshlrev_b32 v9, 4, v4""")
    for r in (16, 18, 20, 22):
        A(f"v_add_f32_dpp v{r}, v{r}, v{r} row_ror:8 row_mask:0xf bank_mask:0xf")
    for sw in ("16", "32"):
        for r in (16, 18, 20, 22): A(f"v_mov_b32 v{r+1}, v{r}")
        for r in (16, 18, 20, 22): A(f"v_permlane{sw}_swap_b32 v{r}, v{r+1}")
        for r in (16, 18, 20, 22): A(f"v_add_f32 v{r}, v{r}, v{r+1}")
    A(f"""s_mov_b64 exec, 0xff
      ds_add_f32 v9, v16 offset:{L_FACC}
      ds_add_f32 v9, v18 offset:{L_FACC+4}
      ds_add_f32 v9, v20 offset:{L_FACC+8}
      ds_add_f32 v9, v22 offset:{L_FACC+12}
      s_mov_b64 exec, -1""")
    lds_count(C_FIN)
    A(f"""s_cmp_lg_u32 s44, 7
      s_cbranch_scc1 L_DONE
      ds_read_b128 {vr(16)}, v9 offset:{L_FACC}
      s_waitcnt lgkmcnt(0)""")
    for e in range(2):
        rne(16+e, 16+e); rne(18+e, 18+e)
        silu(18+e, 20)
        rne(18+e, 18+e)
        A(f"v_mul_f32 v{16+e}, v{16+e}, v{18+e}")
        rne(16+e, 16+e)
    A(f"""v_lshlrev_b32 v20, 16, v15
      v_and_b32 v21, 0xffff0000, v15
      v_add_f32 v16, v16, v20
      v_add_f32 v17, v17, v21
      v_cvt_pk_bf16_f32 v16, v16, v17
      s_mov_b64 exec, 0xff
      global_store_dword v10, v16, {sp(S_OUT)}
      s_mov_b64 exec, -1
      s_cmp_lg_u32 s60, 0
      s_cbranch_scc1 L_DONE
      PADHERE
      v_mov_b32 v5, {WS_EPOCH}
      s_mov_b64 exec, 1
      global_store_dword v5, v14, {sp(S_WS)}
      s_mov_b64 exec, -1""")
    A.label("L_DONE")
    if stamps:
        A(f"""s_memrealtime s[100:101]
          s_lshl_b32 s44, s2, 4
          s_add_u32 s44, s44, s{S_W}
          s_lshl_b32 s44, s44, 7
          s_add_u32 s44, s44, {STAMP}
          s_add_u32 s44, s{S_WS}, s44
          s_addc_u32 s45, s{S_WS+1}, 0
          s_waitcnt lgkmcnt(0)
          v_mov_b32 v5, 0""")
        for i in range(11):
            A(f"v_mov_b32 v6, s{80+2*i}\n v_mov_b32 v7, s{81+2*i}\n global_store_dwordx2 v5, v[6:7], s[44:45] offset:{i*8}")
    A.label("L_END")
    A("s_endpgm")
    body, npad = A.finish()
    pad = ""
    if opts.get("padto"):
        pad = f"""L_PAD:
s_memrealtime s[98:99]
s_waitcnt lgkmcnt(0)
s_sub_u32 s98, s98, s96
s_cmp_lt_u32 s98, {opts['padto']}
s_cbranch_scc1 L_PAD"""
    body = body.replace("PADHERE", pad)
    name = NAME + "_kernel"
    s = HDR + f"; @launch grid=(256,1,1) block=(1024,1,1) lds={LDS_BYTES}\n"
    s += '.amdgcn_target "amdgcn-amd-amdhsa--gfx950"\n.text\n'
    s += f".globl {name}\n.p2align 8\n.type {name},@function\n{name}:\n" + body
    s += '.section .rodata,"a"\n.p2align 6\n'
    s += f".amdhsa_kernel {name}\n  .amdhsa_next_free_vgpr 128\n  .amdhsa_next_free_sgpr 102\n  .amdhsa_accum_offset 128\n"
    s += "  .amdhsa_group_segment_fixed_size 0\n  .amdhsa_kernarg_size 96\n  .amdhsa_user_sgpr_count 2\n  .amdhsa_user_sgpr_kernarg_segment_ptr 1\n  .amdhsa_system_sgpr_workgroup_id_x 1\n.end_amdhsa_kernel\n"
    return s, npad

if __name__ == "__main__":
    for p in (3000, 4000):
        s, n = gen(stamps=False, opts=dict(win=4, win2=4, padto=p)); open(f"kpad{p}.s", "w").write(s)
```

```python
import sys, struct
from hz import Asm
from asmlib import HDR, NAME

PHI = 0x9E3779B9
WS_EPOCH = 0
WS_QP = 0x10000
WS_OS = 0x1C0000
WS_FLQ = 0x3A000
WS_FLO = 0x3B000
WS_FLH = 0x3C000
WS_OP = 0x40000
WS_HP = 0xC0000
WS_PD = 0x100000
WS_PO = 0x160000
STAMP = 0x30000000
F_XN, F_Q, C_ATT, C_GU, C_VISS, F_O, F_H, C_FIN, L_TAG, C_KISS, F_OP, C_GISS, F_GP = 0, 4, 8, 12, 16, 20, 24, 28, 32, 36, 40, 44, 48
L_FACC = 64
L_XN = 0x100; L_Q = 0x600; L_O = 0x800; L_H = 0x880; L_GU = 0x900; L_ATT = 0x1000; L_ST = 0x3000
LDS_BYTES = 0x3100
CSC = 0.08838834764831845 * 1.4426950408889634
LOG2E = 1.4426950408889634
def f2u(x): return struct.unpack('<I', struct.pack('<f', x))[0]

S_X, S_K, S_V, S_WQ, S_WO, S_BX, S_WG, S_WU, S_WD, S_OUT, S_DBG, S_WS = 8, 10, 12, 14, 16, 18, 20, 22, 24, 26, 28, 30
S_W, S_H, S_S, S_XC, S_KK, S_PLO, S_PHI = 32, 33, 34, 35, 36, 38, 39
S_CB, S_RT, S_RBO, S_LINE, S_N = 40, 41, 42, 43, 37
TILE = 16; ACC = 80; TMP = 112; AF = 120; DD = 124

def gen(stamps=False, nt=True, opts=None):
    opts = opts or {}
    NT = " nt" if nt else ""
    WIN = opts.get("win", None)
    WIN2 = opts.get("win2", None)
    def throttle2(n):
        if WIN2 is not None and n >= WIN2:
            A(f"s_waitcnt vmcnt({WIN2-1})")
    def throttle(n_issued_before):
        if WIN is not None and n_issued_before >= WIN:
            A(f"s_waitcnt vmcnt({WIN-1})")
    A = Asm()
    sp = lambda n: f"s[{n}:{n+1}]"
    vr = lambda n, k=4: f"v[{n}:{n+k-1}]"
    uid = [0]
    def L(p="L"):
        uid[0] += 1; return f"{p}_{uid[0]}"
    def stamp(i):
        if stamps: A(f"s_memrealtime s[{80+2*i}:{81+2*i}]")
    def lds_wait(addr, val=None, vtmp=5, vaddr=6):
        l = L("W"); d = L("WD")
        A(f"v_mov_b32 v{vaddr}, {addr}")
        A.label(l)
        A(f"ds_read_b32 v{vtmp}, v{vaddr}")
        A("s_waitcnt lgkmcnt(0)")
        A(f"v_readfirstlane_b32 s44, v{vtmp}")
        A("s_cmp_lg_u32 s44, 0" if val is None else f"s_cmp_ge_u32 s44, {val}")
        A(f"s_cbranch_scc1 {d}")
        A("s_sleep 1")
        A("s_sub_u32 s79, s79, 1")
        A(f"s_cbranch_scc0 {l}")
        A("s_branch L_DONE")
        A.label(d)
    def lds_set(addr, vt=5, va=6):
        A(f"s_waitcnt lgkmcnt(0)\n v_mov_b32 v{va}, {addr}\n v_mov_b32 v{vt}, 1\n ds_write_b32 v{va}, v{vt}")
    def lds_count(addr, vt=5, va=6):
        A(f"""s_waitcnt lgkmcnt(0)
          v_mov_b32 v{va}, {addr}
          v_mov_b32 v{vt}, 1
          s_mov_b64 exec, 1
          ds_add_rtn_u32 v{vt}, v{va}, v{vt}
          s_waitcnt lgkmcnt(0)
          v_readfirstlane_b32 s44, v{vt}
          s_mov_b64 exec, -1""")
    def lds_count_nr(addr, vt=5, va=6):
        A(f"""v_mov_b32 v{va}, {addr}
          v_mov_b32 v{vt}, 1
          s_mov_b64 exec, 1
          ds_add_u32 v{va}, v{vt}
          s_mov_b64 exec, -1""")
    def gate(name, vtmp=7, vaddr=8):
        if name in (None, "none"): return
        if name.startswith("VISS") and len(name) > 4:
            m = (C_VISS, int(name[4:]))
        else:
            m = dict(KISS=(C_KISS, 8), VISS=(C_VISS, 8), GISS=(C_GISS, 6), OP=(F_OP, None), GP=(F_GP, None), Q=(F_Q, None))[name]
        lds_wait(m[0], m[1], vtmp=vtmp, vaddr=vaddr)
    def mma8(tile, af, acc, first, sets=(TMP, TMP+4)):
        def P(dd):
            t = sets[dd & 1]
            sel = S_PLO if (dd & 1) == 0 else S_PHI
            for p in range(4):
                A(f"v_perm_b32 v{t+p}, v{tile+(2*p+1)*4+(dd>>1)}, v{tile+(2*p)*4+(dd>>1)}, s{sel}")
        def M(dd):
            t = sets[dd & 1]
            c = "0" if first else vr(acc+dd*4)
            A(f"v_mfma_f32_16x16x32_bf16 {vr(acc+dd*4)}, {vr(af)}, {vr(t)}, {c}")
        P(0); P(1)
        for dd in range(8):
            M(dd)
            if dd+2 < 8: P(dd+2)
    def publish64(acc, voff, base_s):
        for k in range(4):
            A(f"v_add_f32_dpp v{DD}, v{acc+(2*k)*4+1}, v{acc+(2*k)*4} row_ror:8 row_mask:{1<<k:#x} bank_mask:0xf")
            A(f"v_add_f32_dpp v{DD+2}, v{acc+(2*k+1)*4+1}, v{acc+(2*k+1)*4} row_ror:8 row_mask:{1<<k:#x} bank_mask:0xf")
        A(f"v_mov_b32 v{DD+3}, v{DD+1}")
        A("s_mov_b32 s46, 0x00ff00ff\n s_mov_b32 s47, 0x00ff00ff\n s_mov_b64 exec, s[46:47]")
        A(f"global_store_dwordx4 v{voff}, {vr(DD)}, {sp(base_s)} sc1")
        A("s_mov_b64 exec, -1")
    def flag_store(off_s, tagv, va=5):
        A(f"v_mov_b32 v{va}, s{off_s}\n s_mov_b64 exec, 1\n global_store_dword v{va}, v{tagv}, {sp(S_WS)} sc1\n s_mov_b64 exec, -1")
    def flag_poll(off_s, n):
        l = L("FP"); ok = L("FPOK")
        A(f"s_add_u32 s64, s{S_WS}, s{off_s}\n s_addc_u32 s65, s{S_WS+1}, 0")
        A.label(l)
        if n == 16:
            A("s_load_dwordx16 s[48:63], s[64:65], 0 glc\n s_waitcnt lgkmcnt(0)")
            for i in range(8):
                A(f"s_xor_b64 s[{48+2*i}:{49+2*i}], s[{48+2*i}:{49+2*i}], s[66:67]")
            for i in range(1, 8):
                A(f"s_or_b64 s[48:49], s[48:49], s[{48+2*i}:{49+2*i}]")
        else:
            A("s_load_dwordx4 s[48:51], s[64:65], 0 glc\n s_waitcnt lgkmcnt(0)")
            A("s_xor_b64 s[48:49], s[48:49], s[66:67]\n s_xor_b32 s50, s50, s66\n s_or_b32 s48, s48, s50\n s_or_b64 s[48:49], s[48:49], 0".replace("s_or_b64 s[48:49], s[48:49], 0", "s_or_b32 s48, s48, s49"))
        if n == 16:
            A(f"s_cbranch_scc0 {ok}")
        else:
            A(f"s_cbranch_scc0 {ok}")
        A("s_sub_u32 s79, s79, 1")
        A(f"s_cbranch_scc0 {l}")
        A("s_branch L_DONE")
        A.label(ok)
    def rowred(op, v):
        for r in (8, 4, 2, 1):
            A(f"v_{op}_f32_dpp v{v}, v{v}, v{v} row_ror:{r} row_mask:0xf bank_mask:0xf")
    def crossrow(op, v, t):
        A(f"v_mov_b32 v{t}, v{v}\n v_permlane16_swap_b32 v{v}, v{t}\n v_{op}_f32 v{v}, v{v}, v{t}")
        A(f"v_mov_b32 v{t}, v{v}\n v_permlane32_swap_b32 v{v}, v{t}\n v_{op}_f32 v{v}, v{v}, v{t}")
    def rne(dst, src):
        A(f"v_cvt_pk_bf16_f32 v{dst}, v{src}, v{src}\n v_lshlrev_b32 v{dst}, 16, v{dst}")
    def silu(v, t):
        A(f"""v_mul_f32 v{t}, {f2u(-LOG2E):#x}, v{v}
          v_exp_f32 v{t}, v{t}
          v_add_f32 v{t}, 1.0, v{t}
          v_rcp_f32 v{t}, v{t}
          v_mul_f32 v{v}, v{v}, v{t}""")
    def tagcheck(tagv, regs, acc, t1, t2, retry):
        first = True
        for i in range(0, len(regs), 2):
            A(f"v_xor_b32 v{t1}, v{tagv}, v{regs[i]}")
            if i+1 < len(regs):
                A(f"v_xor_b32 v{t2}, v{tagv}, v{regs[i+1]}")
                A(f"v_or_b32 v{acc}, v{t1}, v{t2}" if first else f"v_or3_b32 v{acc}, v{acc}, v{t1}, v{t2}")
            else:
                A(f"v_mov_b32 v{acc}, v{t1}" if first else f"v_or_b32 v{acc}, v{acc}, v{t1}")
            first = False
        ok = L("OK")
        A(f"v_cmp_ne_u32 vcc, 0, v{acc}")
        A(f"s_cbranch_vccz {ok}")
        A("s_sub_u32 s79, s79, 1")
        A(f"s_cbranch_scc0 {retry}")
        A("s_branch L_DONE")
        A.label(ok)
    def row_of_lane(dst):
        A(f"v_lshlrev_b32 v{dst}, 5, v3\n v_lshl_add_u32 v{dst}, v1, 3, v{dst}")
    def arow_of_lane(dst):
        A(f"v_and_b32 v{dst}, 1, v0\n v_lshlrev_b32 v{dst}, 5, v{dst}\n v_lshl_add_u32 v{dst}, v1, 3, v{dst}")
    def tile1152(rowbase_s, line_s, wbase, outbase, rb_s, flag, vec, tb=TILE, params=True, issue=True, ps=52):
        row_of_lane(5)
        A(f"""s_lshl_b32 s44, s{rb_s}, 6
          v_add_u32 v6, s44, v5
          v_mul_u32_u24 v6, 1152, v6
          v_lshl_add_u32 v6, v4, 4, v6
          s_lshl_b32 s44, s{line_s}, 7
          v_add_u32 v6, s44, v6
          v_add_u32 v7, 4608, v6""")
        for i in range(8):
            throttle2(i)
            A(f"global_load_dwordx4 {vr(tb+4*i)}, v{6+(i>>2)}, {sp(wbase)} offset:{(i&3)*1152}{NT}")
        A(f"""s_mul_i32 s{ps+2}, s{rb_s}, 4608
          s_lshl_b32 s44, s{line_s}, 9
          s_add_u32 s{ps+2}, s{ps+2}, s44
          s_add_u32 s{ps+2}, s{ps+2}, {outbase}
          s_mov_b32 s{ps}, {flag}
          s_mov_b32 s{ps+1}, {vec}""")

    stamp(0)
    A(f"""s_cmp_ge_u32 s2, 256
      s_cbranch_scc1 L_END
      s_load_dwordx16 s[8:23], s[0:1], 0
      s_load_dwordx8 s[24:31], s[0:1], 64
      v_lshrrev_b32 v1, 6, v0
      v_and_b32 v0, 63, v0
      v_readfirstlane_b32 s{S_W}, v1
      s_and_b32 s{S_XC}, s2, 7
      s_lshr_b32 s{S_KK}, s2, 3
      s_lshr_b32 s{S_H}, s2, 7
      s_lshl_b32 s{S_H}, s{S_H}, 3
      s_add_u32 s{S_H}, s{S_H}, s{S_XC}
      s_and_b32 s{S_S}, s{S_KK}, 15
      s_mov_b32 s79, 100000
      s_mov_b32 s{S_PLO}, 0x05040100
      s_mov_b32 s{S_PHI}, 0x07060302
      v_mov_b32 v5, 0
      v_lshlrev_b32 v6, 2, v0
      ds_write_b32 v6, v5
      v_lshrrev_b32 v1, 4, v0
      v_and_b32 v2, 15, v0
      v_bfe_u32 v3, v0, 3, 1
      v_and_b32 v4, 7, v0
      s_mul_i32 s44, s{S_KK}, 11
      s_lshr_b32 s44, s44, 5
      s_mul_i32 s45, s44, 3
      s_sub_u32 s{S_RT}, s{S_KK}, s45
      s_mul_i32 s{S_CB}, s{S_XC}, 9
      s_add_u32 s{S_CB}, s{S_CB}, s44
      s_mul_i32 s44, s{S_KK}, 57
      s_lshr_b32 s44, s44, 9
      s_mul_i32 s45, s44, 9
      s_sub_u32 s{S_LINE}, s{S_KK}, s45
      s_add_u32 s44, s44, 5
      s_sub_u32 s45, s{S_KK}, 27
      s_cmp_lt_u32 s{S_KK}, 27
      s_cselect_b32 s44, s44, s45
      s_mov_b32 s{S_N}, s44
      s_lshl_b32 s45, s{S_XC}, 2
      s_add_u32 s45, s45, s44
      s_add_u32 s46, s45, 28
      s_cmp_lt_u32 s44, 4
      s_cselect_b32 s{S_RBO}, s45, s46
      s_waitcnt lgkmcnt(0)
      s_cmp_lt_u32 s{S_W}, 2
      s_cbranch_scc1 L_W01""")
    if opts.get("earlyk"):
        A(f"s_cmp_ge_u32 s{S_W}, 8\n s_cbranch_scc1 L_ATT\n s_barrier\n s_branch L_GV")
    else:
        A("s_barrier")
        stamp(1)
        A(f"""s_cmp_ge_u32 s{S_W}, 8
          s_cbranch_scc1 L_ATT
          s_branch L_GV""")
    A.label("L_W01")
    A(f"""s_setprio 3
      s_cmp_eq_u32 s{S_W}, 1
      s_cbranch_scc1 L_W1""")

    A(f"""s_lshr_b32 s44, s{S_S}, 2
      s_mul_i32 s48, s44, 144
      s_lshl_b32 s45, s48, 13
      s_lshl_b32 s46, s{S_H}, 9
      s_add_u32 s45, s45, s46
      s_and_b32 s46, s{S_S}, 3
      s_lshl_b32 s46, s46, 7
      s_add_u32 s45, s45, s46""")
    row_of_lane(5)
    A(f"""v_lshlrev_b32 v6, 13, v5
      v_lshl_add_u32 v6, v4, 4, v6
      v_add_u32 v6, s45, v6""")
    for i in range(8):
        A(f"global_load_dwordx4 {vr(16+4*i)}, v6, {sp(S_WQ)}{NT}")
        A(f"v_add_u32 v6, {8192 if i < 7 else 57*8192}, v6")
    for i in range(8):
        A(f"global_load_dwordx4 {vr(48+4*i)}, v6, {sp(S_WQ)}{NT}")
        if i < 7: A("v_add_u32 v6, 8192, v6")
    A(f"""v_lshlrev_b32 v7, 3, v3
      v_lshl_add_u32 v7, v1, 1, v7
      v_add_u32 v8, 128, v7
      v_lshlrev_b32 v8, 13, v8
      v_lshl_add_u32 v8, v4, 4, v8
      v_add_u32 v8, s45, v8""")
    A(f"global_load_dwordx4 {vr(80)}, v8, {sp(S_WQ)}{NT}")
    A("v_add_u32 v8, 8192, v8")
    A(f"global_load_dwordx4 {vr(84)}, v8, {sp(S_WQ)}{NT}")
    A("s_barrier")
    stamp(1)
    arow_of_lane(10)
    A(f"""v_add_u32 v10, s48, v10
      v_lshlrev_b32 v10, 1, v10
      v_and_b32 v11, 1, v0
      v_lshlrev_b32 v11, 3, v11
      v_lshl_add_u32 v11, v1, 1, v11
      v_add_u32 v11, s48, v11
      v_lshlrev_b32 v11, 1, v11
      s_lshl_b32 s45, s{S_H}, 4
      s_add_u32 s45, s45, s{S_S}
      s_lshl_b32 s45, s45, 9
      s_add_u32 s45, s45, {WS_QP}
      v_lshlrev_b32 v9, 7, v1
      v_lshl_add_u32 v9, v4, 4, v9
      v_add_u32 v9, s45, v9""")
    lds_wait(F_XN)
    stamp(2)
    A(f"""ds_read_b128 {vr(120)}, v10 offset:{L_XN}
      ds_read_b128 {vr(12)}, v10 offset:{L_XN+128}
      ds_read_b32 v10, v11 offset:{L_XN+256}
      v_mov_b32 v11, 0
      s_waitcnt vmcnt(10) lgkmcnt(0)""")
    W0ACC = 88
    stamp(4)
    mma8(16, 120, W0ACC, True, sets=(124, 4))
    A("s_waitcnt vmcnt(2)")
    stamp(5)
    mma8(48, 12, W0ACC, False, sets=(124, 4))
    A(f"""v_mov_b32 v5, {L_TAG}
      ds_read_b32 v{DD+1}, v5
      v_mov_b32 v17, 0
      v_mov_b32 v19, 0
      s_waitcnt vmcnt(0)""")
    stamp(6)
    for dd in range(8):
        t = 16 + (dd & 1) * 2
        sel = S_PLO if (dd & 1) == 0 else S_PHI
        A(f"v_perm_b32 v{t}, v{84+(dd>>1)}, v{80+(dd>>1)}, s{sel}")
        A(f"v_mfma_f32_16x16x16_bf16 {vr(W0ACC+dd*4)}, v[10:11], v[{t}:{t+1}], {vr(W0ACC+dd*4)}")
    A("s_waitcnt lgkmcnt(0)")
    stamp(7)
    publish64(W0ACC, 9, S_WS)
    stamp(8)

    stamp(3)
    A(f"v_mov_b32 v14, v{DD+1}")
    A(f"""s_cmp_ge_u32 s{S_KK}, 27
      s_cbranch_scc1 L_DONE
      s_mul_i32 s45, s{S_CB}, 3072
      s_add_u32 s45, s45, {WS_HP}
      v_lshlrev_b32 v7, 4, v0
      v_add_u32 v7, s45, v7""")

    lds_wait(F_GP, vtmp=10, vaddr=11)
    stamp(9)
    A.label("L_HSW")

    for r in range(3):
        A(f"global_load_dwordx4 {vr(16+4*r)}, v7, {sp(S_WS)} offset:{r*1024} sc1")
    A("s_waitcnt vmcnt(0)")
    tagcheck(14, [17, 19, 21, 23, 25, 27], 52, 53, 54, "L_HSW")
    stamp(1)
    A("""v_add_f32 v16, v16, v20
      v_add_f32 v18, v18, v22
      v_add_f32 v16, v16, v24
      v_add_f32 v18, v18, v26""")
    rne(16, 16); rne(18, 18)
    silu(16, 20)
    rne(16, 16)
    A(f"""v_mul_f32 v16, v16, v18
      v_cvt_pk_bf16_f32 v16, v16, v16
      v_lshlrev_b32 v9, 1, v0
      ds_write_b16 v9, v16 offset:{L_H}""")
    lds_set(F_H)
    stamp(2)
    stamp(2)
    A("s_branch L_DONE")

    A.label("L_W1")
    A(f"""v_lshlrev_b32 v5, 4, v0
      v_mov_b32 v20, 0
      v_mov_b32 v21, 0
      v_mov_b32 v22, 0
      v_mov_b32 v23, 0
      global_load_dwordx4 {vr(16)}, v5, {sp(S_X)}
      s_mov_b64 exec, 0xff
      global_load_dwordx4 {vr(20)}, v5, {sp(S_X)} offset:1024
      s_mov_b64 exec, -1
      s_load_dword s48, {sp(S_WS)}, {WS_EPOCH} glc
      s_barrier
      s_waitcnt vmcnt(0)""")
    stamp(1)
    for i in range(8):
        A(f"v_lshlrev_b32 v{24+2*i}, 16, v{16+i}\n v_and_b32 v{25+2*i}, 0xffff0000, v{16+i}")
    A("v_add_f32 v40, v24, v25")
    for i in range(26, 40): A(f"v_add_f32 v40, v40, v{i}")
    rowred("add", 40); crossrow("add", 40, 41)
    A(f"v_mul_f32 v40, {f2u(1.0/576):#x}, v40")
    A("v_sub_f32 v42, v24, v40\n v_mul_f32 v41, v42, v42")
    for i in range(25, 32):
        A(f"v_sub_f32 v42, v{i}, v40\n v_fmac_f32 v41, v42, v42")
    A("s_mov_b64 exec, 0xff")
    for i in range(32, 40):
        A(f"v_sub_f32 v42, v{i}, v40\n v_fmac_f32 v41, v42, v42")
    A("s_mov_b64 exec, -1")
    rowred("add", 41); crossrow("add", 41, 42)
    A(f"v_mul_f32 v41, {f2u(1.0/576):#x}, v41")
    rne(40, 40); rne(41, 41)
    A(f"v_add_f32 v41, {f2u(1e-5):#x}, v41")
    rne(41, 41)
    A("v_sqrt_f32 v41, v41")
    rne(41, 41)
    A("v_rcp_f32 v41, v41")
    for i in range(8):
        a, b = 24+2*i, 25+2*i
        A(f"""v_sub_f32 v{a}, v{a}, v40
          v_sub_f32 v{b}, v{b}, v40
          v_cvt_pk_bf16_f32 v{a}, v{a}, v{b}
          v_and_b32 v{b}, 0xffff0000, v{a}
          v_lshlrev_b32 v{a}, 16, v{a}
          v_mul_f32 v{a}, v{a}, v41
          v_mul_f32 v{b}, v{b}, v41
          v_cvt_pk_bf16_f32 v{16+i}, v{a}, v{b}""")
    A(f"""ds_write_b128 v5, {vr(16)} offset:{L_XN}
      s_mov_b64 exec, 0xff
      ds_write_b128 v5, {vr(20)} offset:{L_XN+1024}
      s_mov_b64 exec, -1
      s_waitcnt lgkmcnt(0)
      s_add_u32 s48, s48, {PHI}
      v_mov_b32 v14, s48
      s_mov_b32 s66, s48
      v_mov_b32 v6, {L_TAG}
      ds_write_b32 v6, v14""")
    lds_set(F_XN)
    stamp(2)
    A(f"""s_lshl_b32 s45, s{S_H}, 13
      s_add_u32 s45, s45, {WS_QP}
      v_lshlrev_b32 v7, 4, v0
      v_add_u32 v7, s45, v7
      v_add_u32 v8, 4096, v7""")
    gate(opts.get("g_q", "KISS"), vtmp=5, vaddr=6)
    if stamps: A("s_mov_b32 s98, 0\n s_mov_b32 s99, 0")
    stamp(1)
    A.label("L_QSW")
    if stamps: A("s_add_u32 s98, s98, 0x10000")
    for r in range(4):
        for hh in range(2):
            off = r*2048 + hh*1024
            A(f"global_load_dwordx4 {vr(16+(r*2+hh)*4)}, v{7 if off < 4096 else 8}, {sp(S_WS)} offset:{off & 4095} sc1")
    A("s_waitcnt vmcnt(0)")
    tagcheck(14, [16+4*i+1 for i in range(8)] + [16+4*i+3 for i in range(8)], 48, 49, 50, "L_QSW")
    for hh in range(2):
        for e in (0, 2):
            d = 52+hh*2+e//2
            A(f"v_add_f32 v{d}, v{16+hh*4+e}, v{16+(2+hh)*4+e}")
            A(f"v_add_f32 v{d}, v{d}, v{16+(4+hh)*4+e}")
            A(f"v_add_f32 v{d}, v{d}, v{16+(6+hh)*4+e}")
    A("v_cvt_pk_bf16_f32 v52, v52, v53\n v_cvt_pk_bf16_f32 v54, v54, v55")
    A(f"""v_lshrrev_b32 v9, 5, v0
      v_lshlrev_b32 v9, 7, v9
      v_lshl_add_u32 v9, v4, 4, v9
      v_bfe_u32 v10, v0, 3, 2
      v_lshl_add_u32 v9, v10, 2, v9
      ds_write_b32 v9, v52 offset:{L_Q}
      ds_write_b32 v9, v54 offset:{L_Q+256}""")
    lds_set(F_Q)
    stamp(3)
    A.label("L_OPH")
    A(f"""s_lshl_b32 s45, s{S_RBO}, 13
      s_add_u32 s45, s45, {WS_OP}
      v_lshlrev_b32 v7, 3, v0
      v_add_u32 v7, s45, v7
      v_add_u32 v8, 4096, v7
      s_and_b32 s44, s{S_N}, 1
      s_add_u32 s45, s{S_LINE}, 1
      s_cmp_eq_u32 s{S_N}, 5
      s_cselect_b32 s44, s45, s44
      s_cmp_eq_u32 s{S_N}, 4
      s_cselect_b32 s44, 0, s44
      s_cmp_eq_u32 s{S_N}, 6
      s_cselect_b32 s44, s{S_LINE}, s44
      s_add_u32 s45, s{S_LINE}, 9
      s_cmp_eq_u32 s{S_N}, 7
      s_cselect_b32 s44, s45, s44
      s_lshr_b32 s45, s{S_RBO}, 1
      s_mul_i32 s45, s45, 18
      s_add_u32 s45, s45, s44
      s_lshl_b32 s45, s45, 7
      s_add_u32 s45, s45, {WS_OS}
      v_lshlrev_b32 v9, 3, v2
      v_add_u32 v9, s45, v9
      s_add_u32 s64, s{S_WS}, s45
      s_addc_u32 s65, s{S_WS+1}, 0""")
    if opts.get("otrig", True):
        lp = L("OT"); ok = L("OTOK")
        gate(opts.get("g_ot"), vtmp=10, vaddr=11)
        A.label(lp)
        A("s_load_dwordx16 s[48:63], s[64:65], 0 glc\n s_load_dwordx16 s[8:23], s[64:65], 64 glc\n s_waitcnt lgkmcnt(0)")
        regs = [49+2*i for i in range(8)] + [9+2*i for i in range(8)]
        A(f"s_xor_b32 s44, s{regs[0]}, s66")
        for r in regs[1:]:
            A(f"s_xor_b32 s45, s{r}, s66\n s_or_b32 s44, s44, s45")
        A(f"""s_cmp_eq_u32 s44, 0
          s_cbranch_scc1 {ok}
          s_sub_u32 s79, s79, 1
          s_cbranch_scc0 {lp}
          s_branch L_DONE""")
        A.label(ok)
    else:
        lds_wait(F_OP, vtmp=10, vaddr=11)
    stamp(8)
    A.label("L_OSW")
    if stamps: A("s_add_u32 s98, s98, 0x100")
    A(f"global_load_dwordx2 v[48:49], v9, {sp(S_WS)} sc1")
    for s in range(16):
        off = s*512
        A(f"global_load_dwordx2 v[{16+2*s}:{17+2*s}], v{7 if off < 4096 else 8}, {sp(S_WS)} offset:{off & 4095} sc1")
    A("s_waitcnt vmcnt(0)")
    tagcheck(14, [49] + [17+2*s for s in range(16)], 52, 53, 54, "L_OSW")
    stamp(4)
    A("v_mov_b32 v52, v48")
    rowred("max", 52)
    A("v_sub_f32 v52, v48, v52\n v_exp_f32 v52, v52\n v_mov_b32 v53, v52")
    rowred("add", 53)
    A("v_rcp_f32 v53, v53\n v_mul_f32 v52, v52, v53")
    for s in range(16):
        A(f"v_readlane_b32 s{48+s}, v52, {s}")
    A("v_mul_f32 v55, s48, v16")
    for s in range(1, 16):
        A(f"v_fmac_f32 v55, s{48+s}, v{16+2*s}")
    A(f"""v_cvt_pk_bf16_f32 v55, v55, v55
      v_lshrrev_b32 v9, 3, v0
      v_lshl_add_u32 v9, v4, 3, v9
      v_lshlrev_b32 v9, 1, v9
      ds_write_b16 v9, v55 offset:{L_O}""")
    lds_set(F_O)
    stamp(5)
    A("s_branch L_DONE")

    def task2(tb, ps):
        arow_of_lane(5)
        A(f"""v_lshlrev_b32 v10, 1, v5
          v_add_u32 v10, s{ps+1}, v10
          v_lshlrev_b32 v9, 7, v1
          v_lshl_add_u32 v9, v4, 4, v9
          v_add_u32 v9, s{ps+2}, v9
          v_mov_b32 v6, s{ps}""")
        lw = L("W"); ld = L("WD")
        A.label(lw)
        A(f"""ds_read_b32 v5, v6
          s_waitcnt lgkmcnt(0)
          v_readfirstlane_b32 s44, v5
          s_cmp_lg_u32 s44, 0
          s_cbranch_scc1 {ld}
          s_sleep 1
          s_sub_u32 s79, s79, 1
          s_cbranch_scc0 {lw}
          s_branch L_DONE""")
        A.label(ld)
        A("s_setprio 3")
        stamp(7)
        A(f"""ds_read_b128 {vr(AF)}, v10
          v_mov_b32 v5, {L_TAG}
          ds_read_b32 v{DD+1}, v5
          s_waitcnt vmcnt(0) lgkmcnt(0)""")
        mma8(tb, AF, ACC, True)
        publish64(ACC, 9, S_WS)
        stamp(8)
    LATE_A = opts.get("lateA", "wo")
    NB_EARLY = opts.get("nb_early", 9)
    A.label("L_GV")
    if opts.get("pretouch"):
        sk = L("PT")
        A(f"s_cmp_lg_u32 s{S_W}, 7\n s_cbranch_scc1 {sk}")
        A(f"""s_lshl_b32 s44, s{S_H}, 24
          s_lshl_b32 s45, s{S_S}, 16
          s_add_u32 s44, s44, s45
          s_add_u32 s44, s44, {61440*256}
          s_add_u32 s46, s{S_V}, s44
          s_addc_u32 s47, s{S_V+1}, 0
          v_mov_b32 v60, s46
          v_mov_b32 v61, s47""")
        def touch(lane, base, off_expr_lines):
            A(off_expr_lines)
            A(f"s_add_u32 s46, s{base}, s44\n s_addc_u32 s47, s{base+1}, 0\n v_writelane_b32 v60, s46, {lane}\n v_writelane_b32 v61, s47, {lane}")
        A(f"s_min_u32 s48, s{S_CB}, 71")
        for ln, base, extra in ((1, S_WG, 0), (2, S_WU, 0), (3, S_WG, 96*9216), (4, S_WU, 96*9216), (5, S_WG, 191*9216), (6, S_WU, 191*9216)):
            touch(ln, base, f"s_mul_i32 s44, s{S_RT}, {192*9216}\n s_lshl_b32 s45, s48, 7\n s_add_u32 s44, s44, s45\n s_add_u32 s44, s44, {extra}")
        touch(7, S_WD, f"s_mul_i32 s44, s48, {64*1152}")
        touch(8, S_WO, f"s_mul_i32 s44, s{S_RBO}, {64*1152}")
        touch(9, S_WS, f"s_mov_b32 s44, {WS_PD}")
        touch(10, S_OUT, "s_mov_b32 s44, 0")
        touch(11, S_V, f"s_lshl_b32 s44, s{S_H}, 24\n s_lshl_b32 s45, s{S_S}, 16\n s_add_u32 s44, s44, s45\n s_add_u32 s44, s44, {61440*256+65532}")
        A("s_mov_b64 exec, 0xfff\n global_load_dword v62, v[60:61], off\n s_mov_b64 exec, -1")
        A.label(sk)
    A(f"""s_sub_u32 s50, s{S_W}, 2
      s_cmp_ge_u32 s{S_KK}, 27
      s_cbranch_scc1 L_GVB""")
    gate(opts.get("g_gu"))
    stamp(1)
    row_of_lane(5)
    A(f"""s_lshr_b32 s44, s50, 1
      s_mul_i32 s45, s{S_RT}, 3
      s_add_u32 s45, s45, s44
      s_lshl_b32 s51, s45, 6
      v_add_u32 v5, s51, v5
      s_mov_b32 s44, 9216
      v_mul_lo_u32 v9, v5, s44
      v_lshl_add_u32 v9, v4, 4, v9
      s_lshl_b32 s44, s{S_CB}, 7
      v_add_u32 v9, s44, v9
      s_bitcmp1_b32 s50, 0
      s_cselect_b32 s48, s{S_WU}, s{S_WG}
      s_cselect_b32 s49, s{S_WU+1}, s{S_WG+1}""")
    for i in range(8):
        throttle2(i)
        A(f"global_load_dwordx4 {vr(TILE+4*i)}, v9, s[48:49]{NT}")
        if i < 7: A("v_add_u32 v9, 9216, v9")
    arow_of_lane(10)
    A("v_add_u32 v10, s51, v10\n v_lshlrev_b32 v10, 1, v10\n v_mov_b32 v11, v10")
    def a_slot2(early):
        skip = L("S2")
        A(f"s_mov_b32 s55, 0\n s_cmp_gt_u32 s50, 3\n s_cbranch_scc1 {skip}\n s_mov_b32 s55, 1")
        wo = L("S2WO")
        A(f"s_cmp_eq_u32 s50, 3\n s_cbranch_scc1 {wo}")
        if (LATE_A == "all") == (not early):
            A(f"s_mul_i32 s51, s{S_RT}, 3\n s_add_u32 s51, s51, s50")
            tile1152(None, 51, S_WD, WS_PD, S_CB, F_H, L_H, tb=48)
        A(f"s_branch {skip}")
        A.label(wo)
        if (LATE_A in ("wo", "all")) == (not early):
            A(f"s_mov_b32 s51, s{S_LINE}")
            tile1152(None, 51, S_WO, WS_PO, S_RBO, F_O, L_O, tb=48)
        A.label(skip)
    lds_count_nr(C_GISS)
    A("s_mov_b32 s55, 0\n s_cmp_le_u32 s50, 3\n s_cselect_b32 s55, 1, 0")
    if LATE_A == "none":
        sk = L("SK")
        A(f"s_cmp_eq_u32 s55, 0\n s_cbranch_scc1 {sk}")
        gate(opts.get("g_t2"))
        a_slot2(True)
        A.label(sk)
    stamp(2)
    lds_wait(F_XN, vtmp=7, vaddr=8)
    n2 = L("N2")
    A(f"ds_read_b128 {vr(AF)}, v11 offset:{L_XN}")
    A(f"s_cmp_eq_u32 s55, 0\n s_cbranch_scc1 {n2}")
    if LATE_A == "none":
        A("s_waitcnt vmcnt(8) lgkmcnt(0)\n s_branch L_GUGO")
    elif LATE_A == "wo":
        A(f"s_cmp_eq_u32 s50, 3\n s_cbranch_scc1 {n2}\n s_waitcnt vmcnt(8) lgkmcnt(0)\n s_branch L_GUGO")
    A.label(n2)
    A("s_waitcnt vmcnt(0) lgkmcnt(0)")
    A.label("L_GUGO")
    A("s_setprio 3")
    stamp(3)
    mma8(TILE, AF, ACC, True)
    for dd in range(8):
        A(f"v_add_f32_dpp v{TILE+dd}, v{ACC+dd*4+1}, v{ACC+dd*4} row_ror:8 row_mask:0xf bank_mask:0xf")
    A(f"""s_lshl_b32 s44, s50, 8
      v_lshlrev_b32 v6, 5, v4
      v_add_u32 v6, s44, v6
      s_mov_b64 exec, 0xff
      ds_write_b128 v6, {vr(TILE)} offset:{L_GU}
      ds_write_b128 v6, {vr(TILE+4)} offset:{L_GU+16}
      s_mov_b64 exec, -1""")
    lds_count(C_GU)
    A(f"""s_cmp_lg_u32 s44, 5
      s_cbranch_scc1 L_GUX
      v_lshlrev_b32 v6, 2, v0""")
    for v in range(6):
        A(f"ds_read_b32 v{16+v}, v6 offset:{L_GU+v*256}")
    A(f"""v_mov_b32 v7, {L_TAG}
      ds_read_b32 v25, v7
      s_mul_i32 s44, s{S_CB}, 3
      s_add_u32 s44, s44, s{S_RT}
      s_lshl_b32 s44, s44, 10
      s_add_u32 s44, s44, {WS_HP}
      v_lshlrev_b32 v6, 4, v0
      v_add_u32 v6, s44, v6
      s_waitcnt lgkmcnt(0)
      v_add_f32 v24, v16, v18
      v_add_f32 v26, v17, v19
      v_add_f32 v24, v24, v20
      v_add_f32 v26, v26, v21
      v_mov_b32 v27, v25
      global_store_dwordx4 v6, {vr(24)}, {sp(S_WS)} sc1""")
    lds_set(F_GP)
    stamp(4)
    A.label("L_GUX")
    A("s_setprio 0")
    A("s_cmp_eq_u32 s55, 0\n s_cbranch_scc1 L_DONE")
    if LATE_A != "none":
        skipl = L("SL")
        if LATE_A == "wo":
            A(f"s_cmp_lg_u32 s50, 3\n s_cbranch_scc1 {skipl}")
        gate(opts.get("g_t2"))
        a_slot2(False)
        A.label(skipl)
    A("s_branch L_T2_48")
    A.label("L_GVB")
    A("s_mov_b32 s55, 0")
    def b_issue(early):
        l1 = L("B1"); l2 = L("B2")
        if early:
            if NB_EARLY < 6: A(f"s_cmp_ge_u32 s50, {NB_EARLY}\n s_cbranch_scc1 {l1}")
        else:
            A(f"s_cmp_lt_u32 s50, {min(NB_EARLY,6)}\n s_cbranch_scc1 {l1}")
        if early or NB_EARLY < 6:
            tile1152(None, 50, S_WO, WS_PO, S_RBO, F_O, L_O, tb=48)
        A.label(l1)
        A(f"s_cmp_gt_u32 s50, 2\n s_cbranch_scc1 {l2}")
        A("s_add_u32 s51, s50, 6")
        if early:
            A(f"s_cmp_ge_u32 s51, {NB_EARLY}\n s_cbranch_scc1 {l2}")
        else:
            A(f"s_cmp_lt_u32 s51, {NB_EARLY}\n s_cbranch_scc1 {l2}")
        tile1152(None, 51, S_WO, WS_PO, S_RBO, F_O, L_O, tb=16, ps=56)
        A.label(l2)
    lds_count_nr(C_GISS)
    gate(opts.get("g_b1"))
    b_issue(True)
    stamp(2)
    if NB_EARLY < 9:
        gate(opts.get("g_b2"))
        b_issue(False)
    A("s_cmp_gt_u32 s50, 2\n s_cbranch_scc1 L_T2_48\n s_mov_b32 s55, 1")
    A.label("L_T2_48")
    task2(48, 52)
    A(f"s_cmp_lt_u32 s{S_KK}, 27\n s_cbranch_scc1 L_DONE\n s_cmp_eq_u32 s55, 0\n s_cbranch_scc1 L_DONE")
    task2(16, 56)
    A("s_branch L_DONE")

    A.label("L_ATT")
    A(f"""s_setprio 1
      s_sub_u32 s50, s{S_W}, 8
      s_lshl_b32 s44, s{S_H}, 24
      s_lshl_b32 s45, s{S_S}, 8
      s_lshl_b32 s46, s50, 5
      s_add_u32 s45, s45, s46
      s_add_u32 s45, s45, 61440
      s_lshl_b32 s45, s45, 8
      s_add_u32 s44, s44, s45
      s_add_u32 s56, s{S_K}, s44
      s_addc_u32 s57, s{S_K+1}, 0
      s_add_u32 s58, s{S_V}, s44
      s_addc_u32 s59, s{S_V+1}, 0
      v_lshlrev_b32 v5, 8, v2
      v_lshl_add_u32 v5, v1, 4, v5
      v_add_u32 v6, 4096, v5
      v_lshlrev_b32 v7, 10, v1
      v_lshl_add_u32 v7, v2, 4, v7
      v_add_u32 v8, 4096, v7""")
    gate(opts.get("g_k"), vtmp=9, vaddr=10)
    stamp(1)
    for t in range(2):
        for i in range(4):
            if opts.get("earlyk") and t*4+i == min(WIN or 8, 7): A("s_barrier")
            throttle(t*4+i)
            A(f"global_load_dwordx4 {vr(16+(t*4+i)*4)}, v{5+t}, s[56:57] offset:{i*64}{NT}")
    lds_count_nr(C_KISS, vt=9, va=10)
    gate("KISS", vtmp=9, vaddr=10)
    gate(opts.get("g_v"), vtmp=9, vaddr=10)
    for i in range(8):
        throttle(8+i)
        A(f"global_load_dwordx4 {vr(48+i*4)}, v{7+(i>>2)}, s[58:59] offset:{(i&3)*256}{NT}")
    lds_count_nr(C_VISS, vt=9, va=10)
    stamp(2)
    lds_wait(F_Q)
    A("s_setprio 3")
    stamp(3)
    A(f"""v_and_b32 v5, 1, v0
      v_lshlrev_b32 v5, 8, v5
      v_lshl_add_u32 v5, v1, 4, v5""")
    for i in range(4):
        A(f"ds_read_b128 {vr(80+4*i)}, v5 offset:{L_Q+64*i}")
    A("s_waitcnt vmcnt(8) lgkmcnt(0)")
    for i in range(4):
        for t in range(2):
            c = "0" if i == 0 else vr(112+4*t)
            A(f"v_mfma_f32_16x16x32_bf16 {vr(112+4*t)}, {vr(16+(t*4+i)*4)}, {vr(80+4*i)}, {c}")
    A("""v_max3_f32 v9, v112, v113, v114
      v_max3_f32 v9, v9, v115, v116
      v_max3_f32 v9, v9, v117, v118
      v_max_f32 v9, v9, v119""")
    crossrow("max", 9, 10)
    A(f"s_mov_b32 s44, {f2u(CSC):#x}\n v_mul_f32 v9, s44, v9")
    for r in range(8):
        A(f"v_fma_f32 v{112+r}, v{112+r}, s44, -v9\n v_exp_f32 v{112+r}, v{112+r}")
    A("v_add_f32 v10, v112, v113")
    for r in range(2, 8): A(f"v_add_f32 v10, v10, v{112+r}")
    for p in range(4):
        A(f"v_cvt_pk_bf16_f32 v{120+p}, v{112+2*p}, v{113+2*p}")
    crossrow("add", 10, 11)
    A("v_mov_b32 v12, v9\n v_mov_b32 v13, v10")
    stamp(4)
    A("s_waitcnt vmcnt(0)")
    A.label("L_PV")
    stamp(5)
    mma8(48, 120, ACC, True)
    A(f"""s_lshl_b32 s44, s50, 10
      s_add_u32 s44, s44, {L_ATT}
      v_bfe_u32 v5, v0, 1, 2
      v_lshlrev_b32 v5, 4, v5
      v_lshl_add_u32 v5, v3, 3, v5
      v_and_b32 v6, 1, v0
      v_lshl_add_u32 v5, v6, 2, v5
      v_add_u32 v5, s44, v5
      s_lshl_b32 s44, s50, 3
      v_lshlrev_b32 v6, 6, v6
      v_add_u32 v6, s44, v6
      s_mov_b64 exec, 0xffff""")
    for dd in range(8):
        A(f"ds_write2_b32 v5, v{ACC+dd*4}, v{ACC+dd*4+1} offset0:{dd*16} offset1:{128+dd*16}")
    A(f"""s_mov_b64 exec, 3
      ds_write_b64 v6, v[12:13] offset:{L_ST}
      s_mov_b64 exec, -1""")
    lds_count(C_ATT)
    A(f"""s_cmp_lg_u32 s44, 7
      s_cbranch_scc1 L_ATC
      v_lshlrev_b32 v5, 4, v0
      v_lshrrev_b32 v6, 5, v0
      v_lshlrev_b32 v7, 6, v6""")
    for w in range(8):
        A(f"ds_read_b128 {vr(48+4*w)}, v5 offset:{L_ATT+w*1024}")
    for i in range(4):
        A(f"ds_read_b128 {vr(80+4*i)}, v7 offset:{L_ST+16*i}")
    A(f"""v_mov_b32 v8, {L_TAG}
      ds_read_b32 v101, v8
      s_lshl_b32 s44, s{S_H}, 2
      s_lshl_b32 s44, s44, 13
      s_lshl_b32 s45, s{S_S}, 9
      s_add_u32 s44, s44, s45
      s_add_u32 s44, s44, {WS_OP}
      v_lshlrev_b32 v9, 14, v6
      v_and_b32 v10, 31, v0
      v_lshl_add_u32 v9, v10, 4, v9
      v_add_u32 v9, s44, v9
      v_add_u32 v10, 8192, v9
      s_mul_i32 s44, s{S_H}, {2*18*128}
      s_lshl_b32 s45, s{S_S}, 3
      s_add_u32 s44, s44, s45
      s_add_u32 s44, s44, {WS_OS}
      v_mul_u32_u24 v11, {18*128}, v6
      v_and_b32 v8, 31, v0
      v_lshl_add_u32 v11, v8, 7, v11
      v_add_u32 v11, s44, v11
      s_waitcnt lgkmcnt(0)
      v_max3_f32 v96, v80, v82, v84
      v_max3_f32 v96, v96, v86, v88
      v_max3_f32 v96, v96, v90, v92
      v_max_f32 v96, v96, v94""")
    for w in range(8):
        A(f"v_sub_f32 v{80+2*w}, v{80+2*w}, v96\n v_exp_f32 v{80+2*w}, v{80+2*w}")
    A("v_mul_f32 v98, v80, v81")
    for w in range(1, 8): A(f"v_fmac_f32 v98, v{80+2*w}, v{81+2*w}")
    for e in range(4):
        A(f"v_mul_f32 v{100+2*e}, v80, v{48+e}")
    for w in range(1, 8):
        for e in range(4):
            A(f"v_fmac_f32 v{100+2*e}, v{80+2*w}, v{48+4*w+e}")
    A(f"""v_rcp_f32 v99, v98
      v_log_f32 v98, v98
      v_mov_b32 v103, v101
      v_mov_b32 v105, v101
      v_mov_b32 v107, v101
      v_mul_f32 v100, v100, v99
      v_mul_f32 v102, v102, v99
      v_mul_f32 v104, v104, v99
      v_mul_f32 v106, v106, v99
      v_add_f32 v96, v96, v98
      v_mov_b32 v97, v101
      global_store_dwordx4 v9, {vr(100)}, {sp(S_WS)} sc1
      global_store_dwordx4 v10, {vr(104)}, {sp(S_WS)} sc1
      s_cmp_lt_u32 s{S_H}, 8
      s_cselect_b32 s46, 0x3, 0x3ffff
      s_mov_b32 s47, s46
      s_mov_b64 exec, s[46:47]
      global_store_dwordx2 v11, v[96:97], {sp(S_WS)} sc1
      s_mov_b64 exec, -1""")
    lds_set(F_OP)
    A.label("L_ATC")
    A("s_setprio 0")
    stamp(6)
    A.label("L_FINCHK")
    A(f"""s_cmp_lt_u32 s2, 216
      s_cbranch_scc1 L_DONE""")
    A(f"""s_sub_u32 s60, s{S_KK}, 27
      s_lshl_b32 s60, s60, 3
      s_add_u32 s60, s60, s{S_XC}
      s_cmp_ge_u32 s60, 36
      s_cbranch_scc1 L_DONE
      s_lshl_b32 s61, s60, 7
      v_lshrrev_b32 v5, 3, v0
      s_lshl_b32 s44, s50, 3
      v_add_u32 v6, s44, v5
      v_mul_u32_u24 v6, 4608, v6
      v_lshl_add_u32 v6, v4, 4, v6
      v_add_u32 v6, s61, v6
      v_add_u32 v6, {WS_PO}, v6
      s_mul_i32 s44, s50, 9
      v_add_u32 v7, s44, v5
      v_mul_u32_u24 v7, 4608, v7
      v_lshl_add_u32 v7, v4, 4, v7
      v_add_u32 v7, s61, v7
      v_add_u32 v7, {WS_PD}, v7
      s_add_u32 s44, s44, 8
      s_mul_i32 s44, s44, 4608
      s_add_u32 s44, s44, s61
      s_add_u32 s44, s44, {WS_PD}
      v_lshlrev_b32 v8, 4, v4
      v_add_u32 v8, s44, v8
      v_mov_b32 v9, {L_TAG}
      ds_read_b32 v14, v9
      s_lshr_b32 s62, s60, 2
      s_lshl_b32 s62, s62, 7
      s_and_b32 s44, s60, 3
      s_lshl_b32 s44, s44, 2
      s_add_u32 s62, s62, s44
      v_lshlrev_b32 v10, 4, v4
      v_add_u32 v10, s62, v10
      global_load_dword v15, v10, {sp(S_X)}
      s_waitcnt lgkmcnt(0)
      v_mov_b32 v24, 0
      v_mov_b32 v25, v14
      v_mov_b32 v26, 0
      v_mov_b32 v27, v14""")
    A.label("L_FSW")
    A(f"""global_load_dwordx4 {vr(16)}, v6, {sp(S_WS)} sc1
      global_load_dwordx4 {vr(20)}, v7, {sp(S_WS)} sc1
      s_mov_b64 exec, 0xff
      global_load_dwordx4 {vr(24)}, v8, {sp(S_WS)} sc1
      s_mov_b64 exec, -1
      s_waitcnt vmcnt(0)""")
    tagcheck(14, [17, 19, 21, 23, 25, 27], 28, 29, 30, "L_FSW")
    stamp(9)
    A(f"""v_add_f32 v20, v20, v24
      v_add_f32 v22, v22, v26
      v_lshlrev_b32 v9, 4, v4""")
    for r in (16, 18, 20, 22):
        A(f"v_add_f32_dpp v{r}, v{r}, v{r} row_ror:8 row_mask:0xf bank_mask:0xf")
    for sw in ("16", "32"):
        for r in (16, 18, 20, 22): A(f"v_mov_b32 v{r+1}, v{r}")
        for r in (16, 18, 20, 22): A(f"v_permlane{sw}_swap_b32 v{r}, v{r+1}")
        for r in (16, 18, 20, 22): A(f"v_add_f32 v{r}, v{r}, v{r+1}")
    A(f"""s_mov_b64 exec, 0xff
      ds_add_f32 v9, v16 offset:{L_FACC}
      ds_add_f32 v9, v18 offset:{L_FACC+4}
      ds_add_f32 v9, v20 offset:{L_FACC+8}
      ds_add_f32 v9, v22 offset:{L_FACC+12}
      s_mov_b64 exec, -1""")
    lds_count(C_FIN)
    A(f"""s_cmp_lg_u32 s44, 7
      s_cbranch_scc1 L_DONE
      ds_read_b128 {vr(16)}, v9 offset:{L_FACC}
      s_waitcnt lgkmcnt(0)""")
    for e in range(2):
        rne(16+e, 16+e); rne(18+e, 18+e)
        silu(18+e, 20)
        rne(18+e, 18+e)
        A(f"v_mul_f32 v{16+e}, v{16+e}, v{18+e}")
        rne(16+e, 16+e)
    A(f"""v_lshlrev_b32 v20, 16, v15
      v_and_b32 v21, 0xffff0000, v15
      v_add_f32 v16, v16, v20
      v_add_f32 v17, v17, v21
      v_cvt_pk_bf16_f32 v16, v16, v17
      s_mov_b64 exec, 0xff
      global_store_dword v10, v16, {sp(S_OUT)}
      s_mov_b64 exec, -1
      s_cmp_lg_u32 s60, 0
      s_cbranch_scc1 L_DONE
      v_mov_b32 v5, {WS_EPOCH}
      s_mov_b64 exec, 1
      global_store_dword v5, v14, {sp(S_WS)}
      s_mov_b64 exec, -1""")
    A.label("L_DONE")
    if stamps:
        A(f"""s_memrealtime s[100:101]
          s_lshl_b32 s44, s2, 4
          s_add_u32 s44, s44, s{S_W}
          s_lshl_b32 s44, s44, 7
          s_add_u32 s44, s44, {STAMP}
          s_add_u32 s44, s{S_WS}, s44
          s_addc_u32 s45, s{S_WS+1}, 0
          s_waitcnt lgkmcnt(0)
          v_mov_b32 v5, 0""")
        for i in range(11):
            A(f"v_mov_b32 v6, s{80+2*i}\n v_mov_b32 v7, s{81+2*i}\n global_store_dwordx2 v5, v[6:7], s[44:45] offset:{i*8}")
    A.label("L_END")
    A("s_endpgm")
    body, npad = A.finish()
    name = NAME + "_kernel"
    s = HDR + f"; @launch grid=(256,1,1) block=(1024,1,1) lds={LDS_BYTES}\n"
    s += '.amdgcn_target "amdgcn-amd-amdhsa--gfx950"\n.text\n'
    s += f".globl {name}\n.p2align 8\n.type {name},@function\n{name}:\n" + body
    s += '.section .rodata,"a"\n.p2align 6\n'
    s += f".amdhsa_kernel {name}\n  .amdhsa_next_free_vgpr 128\n  .amdhsa_next_free_sgpr 102\n  .amdhsa_accum_offset 128\n"
    s += "  .amdhsa_group_segment_fixed_size 0\n  .amdhsa_kernarg_size 96\n  .amdhsa_user_sgpr_count 2\n  .amdhsa_user_sgpr_kernarg_segment_ptr 1\n  .amdhsa_system_sgpr_workgroup_id_x 1\n.end_amdhsa_kernel\n"
    return s, npad

if __name__ == "__main__":
    base = dict(lateA="none", nb_early=9, g_gu="VISS", g_t2="GISS", g_b1="VISS", earlyk=True, win=4, win2=4)
    s, n = gen(stamps=False, opts=base); open("p0.s", "w").write(s)
    s, n = gen(stamps=False, nt=False, opts=base); open("p0_nont.s", "w").write(s)
    s, n = gen(stamps=False, opts=dict(base, win=5, win2=5)); open("p1.s", "w").write(s)
```
